```python
import torch

def _softmax(x, axis=-1):
    return torch.softmax(x, dim=axis)
def _gelu(x):
    return torch.nn.functional.gelu(x, approximate="tanh")
def _silu(x):
    return torch.nn.functional.silu(x)
def _sigmoid(x):
    return torch.sigmoid(x)
def _layernorm(x, axis=-1, eps=1e-5):
    m = x.mean(dim=axis, keepdim=True)
    v = x.var(dim=axis, keepdim=True, unbiased=False)
    return (x - m) / torch.sqrt(v + eps)
def _scatter_add(tgt, idx, src, axis=0):
    return tgt.clone().index_add_(axis, idx, src)
def _segment_sum(src, seg, n):
    out = torch.zeros((n,) + src.shape[1:], dtype=src.dtype)
    return out.index_add_(0, seg, src)
def _pad(x, pw):
    flat = tuple(v for pair in reversed(pw) for v in pair)
    return torch.nn.functional.pad(x, flat)

kernel_name = 'gated_mix__sliding_block_cached__dense_activation_relu__decode'

def setup_inputs():

    _w = (lambda a: (lambda t: t.to(torch.bfloat16) if t.is_floating_point() else t)(torch.as_tensor(a)))
    def _A_setup():
        B, Sq, D = 2, 1, 576
        Hq, Hkv, Sk, Dh = 32, 16, 8192, 128
        assert Hq % Hkv == 0, (Hq, Hkv)
        return {
            "x": _w((lambda *s: torch.randn(*s, dtype=torch.bfloat16) * 0.05)(B, Sq, D)),
            "k_cache": _w((lambda *s: torch.randn(*s, dtype=torch.bfloat16) * 6.4)(B, Hkv, Sk, Dh)),
            "v_cache": _w((lambda *s: torch.randn(*s, dtype=torch.bfloat16) * 1.6)(B, Hkv, Sk, Dh)),
            "wq": _w((lambda *s: torch.randn(*s, dtype=torch.bfloat16) * 6.4)(D, Hq * Dh) * (D ** -0.5)),
            "wo": _w((lambda *s: torch.randn(*s, dtype=torch.bfloat16) * 1.6)(Hq * Dh, D) * ((Hq * Dh) ** -0.5)),
        }
    _A_in = _A_setup()

    def _B_setup():
        B, S, D, Dff = 2, 1, 576, 4608
        return {
            "x": _w((lambda *s: torch.randn(*s, dtype=torch.bfloat16) * 0.05)(B, S, D)),
            "w1": _w((lambda *s: torch.randn(*s, dtype=torch.bfloat16) * 0.05)(D, Dff)),
            "w2": _w((lambda *s: torch.randn(*s, dtype=torch.bfloat16) * 0.05)(Dff, D)),
        }
    _B_in = _B_setup()

    return {
        "A_x": _A_in["x"],
        "A_k_cache": _A_in["k_cache"],
        "A_v_cache": _A_in["v_cache"],
        "A_wq": _A_in["wq"],
        "A_wo": _A_in["wo"],
        "B_x": _B_in["x"],
        "B_w1": _B_in["w1"],
        "B_w2": _B_in["w2"],
        "gate_w": _w((lambda *s: torch.randn(*s, dtype=torch.bfloat16) * 0.05)(576) * 16.0),
    }

def reference(A_x, A_k_cache, A_v_cache, A_wq, A_wo, B_x, B_w1, B_w2, gate_w):
    def _A_ref(x, k_cache, v_cache, wq, wo):
        B, Sq, D = x.shape
        Hq, Dh = 32, 128
        Hkv, Sk = k_cache.shape[1], k_cache.shape[2]
        W = min(4096, max(256, Sk // 4))
        rep = Hq // Hkv
        q = (lambda x, *d: x.permute(*d))((x @ wq).reshape(B, Sq, Hq, Dh), 0, 2, 1, 3)
        k = (lambda x, n, axis: torch.repeat_interleave(x, n, dim=axis))(k_cache[:, :, Sk - W:, :], rep, axis=1)
        v = (lambda x, n, axis: torch.repeat_interleave(x, n, dim=axis))(v_cache[:, :, Sk - W:, :], rep, axis=1)
        scores = torch.einsum("bhqd,bhkd->bhqk", q, k) * (Dh ** -0.5)
        p = _softmax(scores, axis=-1)
        o = torch.einsum("bhqk,bhkd->bhqd", p, v)
        return (lambda x, *d: x.permute(*d))(o, 0, 2, 1, 3).reshape(B, Sq, Hq * Dh) @ wo

    def _B_ref(x, w1, w2):
        h = torch.einsum("bsd,df->bsf", x, w1)
        zero = torch.zeros_like(h)
        h = torch.maximum(h, zero)
        return torch.einsum("bsf,fd->bsd", h, w2)

    x = A_x
    g = _sigmoid((x * gate_w).sum(-1, keepdims=True))
    a = _A_ref(x, A_k_cache, A_v_cache, A_wq, A_wo)
    b = _B_ref(x, B_w1, B_w2)
    return g * a + (1 - g) * b
```

```python
NAME = "gated_mix__sliding_block_cached__dense_activation_relu__decode"
HEADER = open("cdna_kernels/%s.s.ref" % NAME).read().split("; Override launch")[0]

class Asm:
    def __init__(self):
        self.lines = []
        self.nlab = 0
    def __call__(self, s, *a):
        for ln in s.strip("\n").split("\n"):
            self.lines.append("    " + ln.strip() if not ln.strip().endswith(":") else ln.strip())
    def label(self, name):
        self.lines.append(name + ":")
    def newlabel(self, base="L"):
        self.nlab += 1
        return "%s_%d" % (base, self.nlab)
    def text(self):
        return "\n".join(self.lines)

def wrap(body, grid, block, lds, vgpr, sgpr=96, accum=None):
    if accum is None:
        accum = (vgpr + 3) // 4 * 4
    k = NAME + "_kernel"
    return (HEADER +
        "; @launch grid=(%d,1,1) block=(%d,1,1) lds=%d\n" % (grid, block, lds) +
        '.amdgcn_target "amdgcn-amd-amdhsa--gfx950"\n.text\n.globl %s\n.p2align 8\n.type %s,@function\n%s:\n' % (k, k, k) +
        body + "\n" +
        '.section .rodata,"a"\n.p2align 6\n.amdhsa_kernel %s\n' % k +
        "  .amdhsa_next_free_vgpr %d\n  .amdhsa_next_free_sgpr %d\n  .amdhsa_accum_offset %d\n" % (vgpr, sgpr, accum) +
        "  .amdhsa_group_segment_fixed_size 0\n  .amdhsa_kernarg_size 96\n  .amdhsa_user_sgpr_count 2\n"
        "  .amdhsa_user_sgpr_kernarg_segment_ptr 1\n  .amdhsa_system_sgpr_workgroup_id_x 1\n.end_amdhsa_kernel\n")

def vr(a, n=1):
    return "v%d" % a if n == 1 else "v[%d:%d]" % (a, a + n - 1)
def sr(a, n=1):
    return "s%d" % a if n == 1 else "s[%d:%d]" % (a, a + n - 1)
```

```python
import sys, math
from asmlib import *

FQ, FA, FW, CA, CR = 0, 4, 8, 64, 68
QV, AV, GS, XS, GW = 256, 768, 1024, 2048, 5120
ACC, ML, WQ, W1, WBF, WBO, LDS_TOTAL = 8192, 16384, 20480, 40960, 77824, 40960, 114688
QIN, HIN, OIN, MLIN, RIN = 0x1000, 0x40000, 0x80000, 0xC8000, 0x100000
RSTRIDE = 208 * 128
CSC = math.log2(math.e) / math.sqrt(128.0)
import struct
def f32bits(x): return struct.unpack("<I", struct.pack("<f", x))[0]

def gen(nt=" nt", stamps=False, pf=True, poll_sleep=1, rsleep=4):
    a = Asm()
    nstamp = [0]
    def stamp(k):
        if stamps:
            a("s_memrealtime s[%d:%d]\ns_waitcnt lgkmcnt(0)" % (64 + 2 * k, 65 + 2 * k))
    def srd(d, p, n):
        a("s_mov_b32 s%d, s%d\ns_mov_b32 s%d, s%d\ns_mov_b32 s%d, 0x%x\ns_mov_b32 s%d, 0x20000" % (d, p, d + 1, p + 1, d + 2, n, d + 3))
    def wsbase(d, s_off, const):
        a("s_add_u32 s%d, %s, 0x%x\ns_add_u32 s%d, s26, s%d\ns_addc_u32 s%d, s27, 0" % (d, s_off, const, d, d, d + 1))
    def spin(flag_off, vtmp="v2", vzero="v1"):
        l = a.newlabel("L_spin"); d = a.newlabel("L_spun")
        a.label(l)
        a("ds_read_b32 %s, %s offset:%d\ns_waitcnt lgkmcnt(0)\nv_readfirstlane_b32 s34, %s\ns_cmp_lg_u32 s34, 0\ns_cbranch_scc1 %s\ns_sleep 1\ns_branch %s" % (vtmp, vzero, flag_off, vtmp, d, l))
        a.label(d)
    def setflag(flag_off, vone="v2", vzero="v1"):
        a("v_mov_b32 %s, 1\nds_write_b32 %s, %s offset:%d" % (vone, vzero, vone, flag_off))
    def xor_reduce(op, regs, tmps):
        for sw in ("v_permlane16_swap_b32", "v_permlane32_swap_b32"):
            for r, t in zip(regs, tmps): a("v_mov_b32 %s, %s" % (t, r))
            pad = max(0, 2 - (len(regs) - 1))
            if pad: a("s_nop %d" % (pad - 1))
            if len(regs) > 1 and len(regs) < 3: pass
            for r, t in zip(regs, tmps): a("%s %s, %s" % (sw, r, t))
            for r, t in zip(regs, tmps): a("%s %s, %s, %s" % (op, r, r, t))
    def poll(loads, vacc, lbl, sleep):
        l = a.newlabel("L_poll" + lbl); d = a.newlabel("L_polled" + lbl)
        a("s_mov_b32 s59, 0")
        a.label(l)
        for dst, txt in loads: a(txt)
        a("s_waitcnt vmcnt(0)")
        regs = [dst + k for dst, _ in loads for k in range(4)]
        for r in regs: a("v_xor_b32 v%d, s57, v%d" % (r, r))
        a("v_or3_b32 %s, v%d, v%d, v%d" % (vacc, regs[0], regs[1], regs[2]))
        rest = regs[3:]
        while rest:
            if len(rest) >= 2:
                a("v_or3_b32 %s, %s, v%d, v%d" % (vacc, vacc, rest[0], rest[1])); rest = rest[2:]
            else:
                a("v_or_b32 %s, %s, v%d" % (vacc, vacc, rest[0])); rest = rest[1:]
        a("v_and_b32 %s, 0xff, %s\nv_cmp_ne_u32 vcc, 0, %s" % (vacc, vacc, vacc))
        a("s_cbranch_vccz %s" % d)
        a("s_add_u32 s59, s59, 1\ns_cmp_lt_u32 s59, 0x8000\ns_cbranch_scc0 %s\ns_sleep %d\ns_branch %s" % (d, sleep, l))
        a.label(d)

    if stamps:
        a("s_memrealtime s[64:65]")
        for k in range(1, 11): a("s_mov_b64 s[%d:%d], 0" % (64 + 2 * k, 65 + 2 * k))
    a("s_cmp_ge_u32 s2, 256\ns_cbranch_scc1 L_end")
    a("s_load_dwordx16 s[4:19], s[0:1], 0\ns_load_dwordx8 s[20:27], s[0:1], 64")
    a("v_lshrrev_b32 v1, 6, v0\nv_and_b32 v0, 63, v0\ns_and_b32 s28, s2, 7\nv_readfirstlane_b32 s3, v1")
    a("s_lshl_b32 s28, s28, 5\ns_lshr_b32 s29, s2, 3\ns_add_u32 s28, s28, s29")
    a("s_lshr_b32 s29, s28, 4\ns_and_b32 s30, s28, 15")
    a("v_mov_b32 v1, 0\nv_lshrrev_b32 v3, 4, v0")
    a("s_mov_b32 s58, 0xffffff00")
    a("s_lshl_b32 s32, s29, 2\ns_add_u32 s32, s32, s30\ns_mov_b32 s33, s32")
    a("s_cmp_lt_u32 s30, 4\ns_cbranch_scc1 L_roled")
    a("s_mul_i32 s32, s29, 9\ns_add_u32 s32, s32, s30\ns_sub_u32 s32, s32, 4\ns_add_u32 s33, s32, 64")
    a("s_cmp_lt_u32 s30, 13\ns_cbranch_scc1 L_roled")
    a("s_mul_i32 s32, s29, 3\ns_add_u32 s32, s32, s30\ns_sub_u32 s32, s32, 13")
    a.label("L_roled")
    a("v_lshrrev_b32 v4, 3, v0\nv_and_b32 v5, 7, v0\nv_and_b32 v6, 2, v4\nv_xor_b32 v5, v5, v6\nv_lshlrev_b32 v5, 4, v5\nv_xor_b32 v6, 64, v5")
    a("v_bfe_u32 v7, v0, 2, 2\nv_lshl_add_u32 v8, v3, 3, v7\nv_lshlrev_b32 v8, 7, v8\nv_and_b32 v9, 3, v0\nv_lshl_add_u32 v8, v9, 3, v8")
    a("v_and_b32 v9, 1, v3\nv_lshlrev_b32 v9, 1, v9\nv_lshrrev_b32 v7, 1, v7\nv_or_b32 v9, v9, v7\nv_lshlrev_b32 v9, 5, v9")
    for T in range(4):
        a("v_xor_b32 v%d, %d, v9\nv_add_u32 v%d, v%d, v8" % (12 + T, T * 32, 12 + T, 12 + T))
    a("v_lshrrev_b32 v10, 2, v0\nv_xor_b32 v10, v10, v0\nv_and_b32 v10, 1, v10")
    a("s_cmp_eq_u32 s3, 8\ns_cbranch_scc1 L_aux")

    if pf:
        a("s_cmp_lg_u32 s3, 7\ns_cbranch_scc1 L_nopf")
        a("s_getpc_b64 s[60:61]")
        a.label("L_pfbase")
        a("v_lshlrev_b32 v2, 7, v0\nv_min_u32 v2, L_end-L_pfbase, v2\nglobal_load_dword v158, v2, s[60:61]\nv_add_u32 v2, 0x2000, v2\nv_min_u32 v2, L_end-L_pfbase, v2\nglobal_load_dword v159, v2, s[60:61]")
        a.label("L_nopf")
    a("v_bfe_u32 v16, v0, 2, 2\nv_lshlrev_b32 v16, 8, v16\nv_lshl_add_u32 v16, v3, 6, v16\nv_and_b32 v17, 3, v0\nv_lshl_add_u32 v16, v17, 4, v16")
    a("v_lshlrev_b32 v17, 4, v0")
    a("s_lshr_b32 s34, s30, 3\ns_lshl_b32 s34, s34, 4\ns_add_u32 s34, s34, s29\ns_lshl_b32 s34, s34, 13\ns_add_u32 s34, s34, 6144")
    a("s_and_b32 s35, s30, 7\ns_lshl_b32 s35, s35, 8\ns_add_u32 s34, s34, s35\ns_lshl_b32 s35, s3, 5\ns_add_u32 s34, s34, s35\ns_lshl_b32 s36, s34, 8")
    a("s_add_u32 s37, s36, 4096")
    a("s_waitcnt lgkmcnt(0)")
    a("s_load_dword s56, s[26:27], 0")
    srd(40, 6, 64 << 20); srd(44, 8, 64 << 20)
    a("s_setprio 1")
    a("s_barrier")
    stamp(1)
    KR, VR, DR = 64, 96, 128
    for t in range(8):
        a("buffer_load_dwordx4 %s, v16, s[40:43], %s offen offset:%d%s" % (vr(KR + 4 * t, 4), "s36" if t < 4 else "s37", (t & 3) * 1024, nt))
    for t in range(8):
        a("buffer_load_dwordx4 %s, v17, s[44:47], %s offen offset:%d%s" % (vr(VR + 4 * t, 4), "s36" if t < 4 else "s37", (t & 3) * 1024, nt))
    stamp(2)
    a("v_bfe_u32 v18, v0, 3, 1\nv_lshlrev_b32 v18, 8, v18\nv_lshl_add_u32 v18, v3, 6, v18\nv_and_b32 v19, 3, v0\nv_lshl_add_u32 v18, v19, 4, v18")
    a("v_and_b32 v19, 1, v0\nv_lshlrev_b32 v19, 4, v19\nv_mov_b32 v24, 0xffff\nv_lshlrev_b32 v24, v19, v24\nv_bfe_u32 v19, v0, 1, 2")
    for i in range(4):
        a("v_cmp_eq_u32 vcc, %d, v19\ns_nop 1\nv_cndmask_b32 v%d, 0, v24, vcc" % (i, 20 + i))
    a("s_waitcnt lgkmcnt(0)\ns_add_u32 s57, s56, 1\ns_and_b32 s57, s57, 0xff\nv_mov_b32 v11, s57")
    a("s_mov_b32 s38, 0x%x" % f32bits(CSC))
    spin(FQ)
    stamp(3)
    a("ds_read_b128 v[24:27], v18 offset:%d\ns_waitcnt lgkmcnt(0)" % QV)
    for t in range(8):
        a("s_waitcnt vmcnt(%d)\nv_mfma_f32_16x16x32_bf16 %s, %s, v[24:27], 0" % (15 - t, vr(DR + 4 * t, 4), vr(KR + 4 * t, 4)))
    a("s_nop 7")
    S = 32
    for t in range(8): a("v_mov_b32_dpp v%d, v%d quad_perm:[0,0,0,0] row_mask:0xf bank_mask:0xf" % (S + t, DR + 4 * t))
    for i in range(1, 4):
        for t in range(8):
            a("v_add_f32_dpp v%d, v%d, v%d quad_perm:[%d,%d,%d,%d] row_mask:0xf bank_mask:0xf" % (S + t, DR + 4 * t + i, S + t, i, i, i, i))
    a("v_max3_f32 v28, v32, v33, v34\nv_max3_f32 v28, v28, v35, v36\nv_max3_f32 v28, v28, v37, v38\nv_max_f32 v28, v28, v39")
    xor_reduce("v_max_f32", ["v28"], ["v30"])
    a("v_mul_f32 v28, s38, v28")
    for t in range(8): a("v_fma_f32 v%d, v%d, s38, -v28" % (S + t, S + t))
    for t in range(8): a("v_exp_f32 v%d, v%d" % (S + t, S + t))
    a("s_nop 0")
    for t in range(8): a("v_cvt_pk_bf16_f32 v%d, v%d, v%d" % (40 + t, S + t, S + t))
    for t in range(8):
        for i in range(4): a("v_and_b32 v%d, v%d, v%d" % (DR + 4 * t + i, 40 + t, 20 + i))
    a("v_add_f32 v29, v32, v33\nv_add_f32 v30, v34, v35\nv_add_f32 v31, v36, v37\nv_add_f32 v32, v38, v39\nv_add_f32 v29, v29, v30\nv_add_f32 v31, v31, v32\nv_add_f32 v29, v29, v31")
    xor_reduce("v_add_f32", ["v29"], ["v30"])
    stamp(4)
    for t in range(8):
        a("s_waitcnt vmcnt(%d)\nv_mfma_f32_16x16x32_bf16 v[24:27], %s, %s, %s" % (7 - t, vr(VR + 4 * t, 4), vr(DR + 4 * t, 4), "0" if t == 0 else "v[24:27]"))
    a("s_lshl_b32 s34, s3, 10\nv_lshl_add_u32 v30, v0, 4, s34\ns_lshl_b32 s34, s3, 9\nv_lshl_add_u32 v31, v0, 3, s34")
    a("ds_write_b64 v31, v[28:29] offset:%d" % ML)
    a("v_mov_b32 v2, 1\ns_nop 3")
    a("ds_write_b128 v30, v[24:27] offset:%d" % ACC)
    a("s_mov_b64 exec, 1\nds_add_rtn_u32 v2, v1, v2 offset:%d\ns_mov_b64 exec, -1\ns_waitcnt lgkmcnt(0)\nv_readfirstlane_b32 s34, v2" % CA)
    stamp(5)
    a("s_cmp_lg_u32 s34, 7\ns_cbranch_scc1 L_att_done")
    a("v_lshlrev_b32 v30, 4, v0\nv_lshlrev_b32 v31, 3, v0")
    for w in range(8): a("ds_read_b64 %s, v31 offset:%d" % (vr(40 + 2 * w, 2), ML + w * 512))
    for w in range(7): a("ds_read_b128 %s, v30 offset:%d" % (vr(KR + 4 * w, 4), ACC + w * 1024))
    a("v_bfe_u32 v34, v0, 3, 1\nv_lshlrev_b32 v32, 13, v34\nv_lshrrev_b32 v35, 1, v3\nv_lshl_add_u32 v32, v35, 12, v32\nv_and_b32 v36, 1, v3\nv_lshl_add_u32 v32, v36, 7, v32\nv_and_b32 v36, 7, v0\nv_lshl_add_u32 v32, v36, 4, v32")
    a("v_lshlrev_b32 v33, 9, v34\nv_lshl_add_u32 v33, v35, 8, v33")
    a("s_lshl_b32 s34, s29, 14\ns_lshl_b32 s35, s30, 8\ns_add_u32 s34, s34, s35")
    wsbase(60, "s34", OIN)
    a("s_lshl_b32 s34, s29, 10\ns_lshl_b32 s35, s30, 4\ns_add_u32 s34, s34, s35")
    wsbase(62, "s34", MLIN)
    a("s_waitcnt lgkmcnt(7)")
    a("ds_read_b128 %s, v30 offset:%d" % (vr(KR + 28, 4), ACC + 7 * 1024))
    a("v_max3_f32 v28, v40, v42, v44\nv_max3_f32 v28, v28, v46, v48\nv_max3_f32 v28, v28, v50, v52\nv_max_f32 v28, v28, v54\nv_and_b32 v28, s58, v28")
    for w in range(8): a("v_sub_f32 v%d, v%d, v28" % (40 + 2 * w, 40 + 2 * w))
    for w in range(8): a("v_exp_f32 v%d, v%d" % (40 + 2 * w, 40 + 2 * w))
    a("s_nop 0\nv_mul_f32 v29, v40, v41")
    for w in range(1, 8): a("v_fmac_f32 v29, v%d, v%d" % (40 + 2 * w, 41 + 2 * w))
    a("s_waitcnt lgkmcnt(0)")
    for i in range(4): a("v_mul_f32 v%d, v40, v%d" % (24 + i, KR + i))
    for w in range(1, 8):
        for i in range(4): a("v_fmac_f32 v%d, v%d, v%d" % (24 + i, 40 + 2 * w, KR + 4 * w + i))
    for i in range(4): a("v_bfi_b32 v%d, s58, v%d, v11" % (24 + i, 24 + i))
    a("global_store_dwordx4 v32, v[24:27], s[60:61] sc1")
    a("v_bfi_b32 v36, s58, v28, v11\nv_bfi_b32 v37, s58, v29, v11\nv_mov_b32 v38, v36\nv_mov_b32 v39, v37")
    a("s_mov_b32 s34, 0x101\ns_mov_b32 exec_lo, s34\ns_mov_b32 exec_hi, s34")
    a("global_store_dwordx4 v33, v[36:39], s[62:63] sc1")
    a("s_mov_b64 exec, -1")
    a.label("L_att_done")
    stamp(6)
    a("s_cmp_ge_u32 s30, 13\ns_cbranch_scc1 L_rpath")
    a("s_cmp_ge_u32 s3, 4\ns_cbranch_scc1 L_young")
    a("s_setprio 0")
    a("s_movk_i32 s34, 1152\nv_mad_u32_u24 v16, v4, s34, v5\nv_mad_u32_u24 v17, v4, s34, v6")
    a("s_cmp_lt_u32 s30, 4\ns_cbranch_scc0 L_ldF")
    def wload(role):
        n = 8 if role == "O" else 4
        wb = WBO if role == "O" else WBF
        if role == "O": srd(48, 12, 4096 * 576 * 2)
        else: srd(48, 18, 4608 * 576 * 2)
        a("s_mul_i32 s36, s32, %d" % (n * 8 * 1152))
        def strip(sreg_strip):
            a("s_mul_i32 s35, %s, %d\ns_add_u32 m0, s35, %d\ns_lshl_b32 s34, %s, 7\ns_add_u32 s34, s34, s36" % (sreg_strip, n * 1024, wb, sreg_strip))
            for rg in range(n):
                a("buffer_load_dwordx4 %s, s[48:51], s34 offen%s lds" % ("v16" if rg % 2 == 0 else "v17", nt))
                if rg < n - 1: a("s_add_u32 m0, m0, 1024\ns_add_u32 s34, s34, %d" % (8 * 1152))
        lab = "L_w0" + role
        a("s_cmp_lg_u32 s3, 0\ns_cbranch_scc1 %s" % lab)
        a("s_mov_b32 s37, 8"); strip("s37")
        a.label(lab)
        a("s_add_u32 s37, s3, 4"); strip("s37")
        strip("s3")
        a("s_cmp_lg_u32 s3, 0\ns_cbranch_scc1 %s" % (lab + "b"))
        a("s_waitcnt vmcnt(%d)" % (2 * n)); setflag(FW + 32)
        a.label(lab + "b")
        a("s_lshl_b32 s34, s3, 2\nv_mov_b32 v16, s34\nv_mov_b32 v2, 1\ns_waitcnt vmcnt(%d)\nds_write_b32 v16, v2 offset:%d" % (n, FW + 16))
        a("s_waitcnt vmcnt(0)")
    wload("O")
    a("s_branch L_frag")
    a.label("L_ldF")
    wload("F")
    a("s_branch L_frag")
    a.label("L_young")
    a("s_lshl_b32 s34, s3, 2\nv_mov_b32 v16, s34")
    spin(FW, vzero="v16")
    a.label("L_frag")
    stamp(7)
    BF = 64
    a("s_cmp_lt_u32 s30, 4\ns_cbranch_scc0 L_fragF")
    def frags(role):
        n = 8 if role == "O" else 4
        wb = WBO if role == "O" else WBF
        a("s_mul_i32 s34, s3, %d\ns_add_u32 s34, s34, %d" % (n * 1024, wb))
        for T in range(4): a("v_add_u32 v%d, s34, v%d" % (16 + T, 12 + T))
        cnt = 0
        for tau in range(n // 4):
            for T in range(4):
                for eta in range(2):
                    if cnt == 14: a("s_waitcnt lgkmcnt(6)"); cnt = 6
                    a("ds_read_b64_tr_b16 %s, v%d offset:%d" % (vr(BF + tau * 16 + T * 4 + eta * 2, 2), 16 + T, tau * 4096 + eta * 512)); cnt += 1
    frags("O")
    a("s_branch L_frag2")
    a.label("L_fragF")
    frags("F")
    a.label("L_frag2")
    a("s_cmp_eq_u32 s3, 8\ns_cbranch_scc1 L_aux_late")
    a.label("L_gemv")
    a("v_bfe_u32 v20, v0, 3, 2\ns_mov_b32 s34, %d\nv_and_b32 v21, 7, v0\nv_lshlrev_b32 v21, 4, v21\nv_mad_u32_u24 v20, v20, s34, v21" % RSTRIDE)
    a("v_lshlrev_b32 v21, 7, v10\nv_lshl_add_u32 v21, v3, 4, v21\nv_and_b32 v22, 1, v3\nv_lshlrev_b32 v22, 2, v22")
    a("s_mul_i32 s34, s3, %d\ns_lshl_b32 s35, s33, 7\ns_add_u32 s34, s34, s35" % (4 * RSTRIDE))
    wsbase(60, "s34", RIN)
    a("s_waitcnt lgkmcnt(0)")
    spin(FA)
    stamp(8)
    a("ds_read_b128 v[24:27], v21 offset:%d\nds_read_b128 v[28:31], v21 offset:%d\nds_read_b32 v23, v22 offset:%d" % (AV, AV + 64, GS))
    a("s_waitcnt lgkmcnt(2)")
    for T in range(4): a("v_mfma_f32_16x16x32_bf16 %s, v[24:27], %s, 0" % (vr(32 + 4 * T, 4), vr(BF + 4 * T, 4)))
    a("s_cmp_lt_u32 s30, 4\ns_cbranch_scc0 L_gemv1")
    a("s_waitcnt lgkmcnt(1)")
    for T in range(4): a("v_mfma_f32_16x16x32_bf16 %s, v[28:31], %s, %s" % (vr(32 + 4 * T, 4), vr(BF + 16 + 4 * T, 4), vr(32 + 4 * T, 4)))
    a.label("L_gemv1")
    a("s_waitcnt lgkmcnt(0)\ns_nop 5")
    for T in range(4): a("v_mul_f32 v%d, v23, v%d" % (24 + T, 32 + 4 * T))
    for T in range(4): a("v_bfi_b32 v%d, s58, v%d, v11" % (24 + T, 24 + T))
    a("s_mov_b32 exec_hi, 0\nglobal_store_dwordx4 v20, v[24:27], s[60:61] sc1\ns_mov_b64 exec, -1")
    stamp(9)
    a("s_branch L_fin")

    a.label("L_rpath")
    a("s_cmp_ge_u32 s32, 36\ns_cbranch_scc1 L_fin")
    a("s_mul_i32 s34, s32, %d\ns_mul_i32 s35, s3, 3072\ns_add_u32 s34, s34, s35" % RSTRIDE)
    wsbase(60, "s34", RIN)
    a("v_lshlrev_b32 v16, 4, v0\ns_cmp_eq_u32 s3, 8\ns_cselect_b32 s35, 1, 2\ns_lshl_b32 s35, s35, 10\ns_cmp_eq_u32 s3, 8\ns_cselect_b32 s36, 0, 1.0\nv_add_u32 v17, s35, v16")
    poll([(32, "global_load_dwordx4 v[32:35], v16, s[60:61] sc1"),
          (36, "global_load_dwordx4 v[36:39], v16, s[60:61] offset:1024 sc1"),
          (40, "global_load_dwordx4 v[40:43], v17, s[60:61] sc1")], "v18", "R", rsleep)
    stamp(8)
    for i in range(4): a("v_add_f32 v%d, v%d, v%d" % (32 + i, 32 + i, 36 + i))
    for i in range(4): a("v_fma_f32 v%d, v%d, s36, v%d" % (32 + i, 40 + i, 32 + i))
    a("s_nop 0")
    for i in range(4): a("v_add_f32_dpp v%d, v%d, v%d row_ror:8 row_mask:0xf bank_mask:0xf" % (32 + i, 32 + i, 32 + i))
    xor_reduce("v_add_f32", ["v32", "v33", "v34", "v35"], ["v36", "v37", "v38", "v39"])
    a("v_and_b32 v16, 7, v0\nv_lshlrev_b32 v16, 4, v16\ns_lshl_b32 s34, s3, 7\nv_add_u32 v17, s34, v16\nv_mov_b32 v2, 1")
    a("ds_write_b128 v17, v[32:35] offset:%d" % WQ)
    a("s_mov_b64 exec, 1\nds_add_rtn_u32 v2, v1, v2 offset:%d\ns_mov_b64 exec, -1\ns_waitcnt lgkmcnt(0)\nv_readfirstlane_b32 s34, v2" % CR)
    a("s_cmp_lg_u32 s34, 8\ns_cbranch_scc1 L_fin")
    for w in range(9): a("ds_read_b128 %s, v16 offset:%d" % (vr(64 + 4 * w, 4), WQ + w * 128))
    a("s_lshr_b32 s34, s32, 2\ns_lshl_b32 s34, s34, 7\ns_bfe_u32 s35, s32, 0x10001\ns_mul_i32 s35, s35, 1152\ns_add_u32 s34, s34, s35\ns_and_b32 s35, s32, 1\ns_lshl_b32 s35, s35, 4\ns_add_u32 s34, s34, s35")
    a("v_lshrrev_b32 v17, 3, v16\nv_add_u32 v17, s34, v17")
    for w in range(1, 9):
        a("s_waitcnt lgkmcnt(%d)" % (8 - w))
        a("v_pk_add_f32 v[64:65], v[64:65], %s\nv_pk_add_f32 v[66:67], v[66:67], %s" % (vr(64 + 4 * w, 2), vr(66 + 4 * w, 2)))
    a("v_cvt_pk_bf16_f32 v32, v64, v65\nv_cvt_pk_bf16_f32 v33, v66, v67")
    a("s_mov_b64 exec, 0xff")
    a("global_store_short v17, v32, s[22:23]\nglobal_store_short_d16_hi v17, v32, s[22:23] offset:32\nglobal_store_short v17, v33, s[22:23] offset:64\nglobal_store_short_d16_hi v17, v33, s[22:23] offset:96")
    a("s_cmp_lg_u32 s32, 0\ns_cbranch_scc1 L_rdone")
    a("s_add_u32 s34, s56, 1\nv_mov_b32 v2, s34\ns_mov_b64 exec, 1\nglobal_store_dword v1, v2, s[26:27]")
    a.label("L_rdone")
    a("s_mov_b64 exec, -1")
    stamp(9)
    a("s_branch L_fin")

    a.label("L_aux")
    a("s_setprio 3")
    a("v_lshlrev_b32 v16, 2, v0\nds_write_b32 v16, v1")
    a("v_mov_b32 v20, 0\nv_mov_b32 v21, 0\nv_mov_b32 v22, 0\nv_mov_b32 v23, 0\nv_lshlrev_b32 v16, 4, v0")
    a("ds_write_b128 v16, v[20:23] offset:%d\nds_write_b128 v16, v[20:23] offset:%d" % (WQ + 144 * 128, WQ + 152 * 128))
    a("v_lshl_add_u32 v17, v4, 13, v5\nv_lshl_add_u32 v18, v4, 13, v6")
    a("s_movk_i32 s34, 9216\nv_mad_u32_u24 v19, v4, s34, v5\nv_mad_u32_u24 v20, v4, s34, v6")
    a("s_and_b32 s34, s28, 3\ns_mul_i32 s36, s34, %d\ns_lshr_b32 s35, s28, 2\ns_lshl_b32 s35, s35, 7\ns_add_u32 s36, s36, s35" % (144 * 8192))
    a("s_waitcnt lgkmcnt(0)")
    a("s_load_dword s56, s[26:27], 0")
    srd(40, 4, 2304); srd(44, 20, 1152); srd(48, 10, 576 * 4096 * 2)
    a("s_mov_b32 m0, %d\ns_nop 0" % XS)
    for k in range(3): a("buffer_load_dwordx4 v16, s[40:43], 0 offen offset:%d lds" % (k * 1024))
    a("s_mov_b32 m0, %d\ns_nop 0" % GW)
    for k in range(2): a("buffer_load_dwordx4 v16, s[44:47], 0 offen offset:%d lds" % (k * 1024))
    a("s_mov_b32 m0, %d\ns_nop 0" % WQ)
    for rg in range(18):
        a("buffer_load_dwordx4 %s, s[48:51], s36 offen%s lds" % ("v17" if rg % 2 == 0 else "v18", nt))
        if rg < 17: a("s_add_u32 m0, m0, 1024\ns_add_u32 s36, s36, %d" % (8 * 8192))
    a("s_cmp_lt_u32 s30, 4\ns_cbranch_scc1 L_aux_nf\ns_cmp_ge_u32 s30, 13\ns_cbranch_scc1 L_aux_nf")
    srd(52, 16, 576 * 4608 * 2)
    a("s_and_b32 s34, s32, 1\ns_mul_i32 s36, s34, %d\ns_lshr_b32 s35, s32, 1\ns_lshl_b32 s35, s35, 7\ns_add_u32 s36, s36, s35\ns_mov_b32 m0, %d\ns_nop 0" % (288 * 9216, W1))
    for rg in range(36):
        a("buffer_load_dwordx4 %s, s[52:55], s36 offen%s lds" % ("v19" if rg % 2 == 0 else "v20", nt))
        if rg < 35: a("s_add_u32 m0, m0, 1024\ns_add_u32 s36, s36, %d" % (8 * 9216))
    a("s_barrier")
    a("s_waitcnt vmcnt(36)")
    a("s_branch L_aux_q")
    a.label("L_aux_nf")
    a("s_barrier")
    a("s_waitcnt vmcnt(0)")
    a.label("L_aux_q")
    stamp(1)
    a("s_waitcnt lgkmcnt(0)\ns_add_u32 s57, s56, 1\ns_and_b32 s57, s57, 0xff\nv_mov_b32 v11, s57")
    def gemv1(nsteps, wbase, s_k0bytes, acc):
        a("s_movk_i32 s34, 1152\nv_mul_lo_u32 v16, v10, s34\nv_lshl_add_u32 v16, v3, 4, v16\nv_add_u32 v16, %s, v16" % s_k0bytes)
        for T in range(4): a("v_add_u32 v%d, %d, v%d" % (20 + T, wbase, 12 + T))
        units = [(tau, T) for tau in range(nsteps) for T in range(4)]
        AB = [24, 28]
        BB = [64, 68, 72, 76]
        q = []
        def issue(u):
            tau, T = units[u]
            if T == 0:
                a("ds_read_b128 %s, v16 offset:%d" % (vr(AB[tau % 2], 4), XS + tau * 64)); q.append(("A", tau))
            for eta in range(2):
                a("ds_read_b64_tr_b16 %s, v%d offset:%d" % (vr(BB[u % 4] + 2 * eta, 2), 20 + T, tau * 4096 + eta * 512)); q.append(("B", u))
        D = 3
        for u in range(min(D, len(units))): issue(u)
        for u in range(len(units)):
            tau, T = units[u]
            last = max(k for k, e in enumerate(q) if e == ("B", u))
            a("s_waitcnt lgkmcnt(%d)" % (len(q) - 1 - last))
            del q[:last + 1]
            a("v_mfma_f32_16x16x32_bf16 %s, %s, %s, %s" % (vr(acc + 4 * T, 4), vr(AB[tau % 2], 4), vr(BB[u % 4], 4), "0" if tau == 0 else vr(acc + 4 * T, 4)))
            if u + D < len(units): issue(u + D)
    a("s_and_b32 s35, s28, 3\ns_mul_i32 s35, s35, 288")
    gemv1(5, WQ, "s35", 32)
    a("v_and_b32 v16, 15, v0\nv_lshlrev_b32 v16, 4, v16\nv_lshl_add_u32 v17, v3, 12, v16")
    a("s_lshl_b32 s34, s29, 13\ns_and_b32 s35, s28, 3\ns_lshl_b32 s35, s35, 10\ns_add_u32 s34, s34, s35\ns_bfe_u32 s35, s28, 0x20002\ns_lshl_b32 s35, s35, 8\ns_add_u32 s34, s34, s35")
    wsbase(60, "s34", QIN)
    for T in range(4): a("v_bfi_b32 v%d, s58, v%d, v11" % (24 + T, 32 + 4 * T))
    a("s_mov_b32 exec_hi, 0\nglobal_store_dwordx4 v17, v[24:27], s[60:61] sc1\ns_mov_b64 exec, -1")
    stamp(2)
    a("s_cmp_lt_u32 s30, 4\ns_cbranch_scc1 L_aux_pq\ns_cmp_ge_u32 s30, 13\ns_cbranch_scc1 L_aux_pq")
    a("s_and_b32 s35, s32, 1\ns_mul_i32 s35, s35, 576\ns_waitcnt vmcnt(1)")
    gemv1(9, W1, "s35", 32)
    a("s_bitcmp1_b32 s32, 0\ns_cselect_b64 s[62:63], -1, 0")
    a("s_xor_b32 s34, s32, 1\ns_lshl_b32 s34, s34, 8")
    wsbase(60, "s34", HIN)
    a("v_and_b32 v16, 15, v0\nv_lshlrev_b32 v16, 4, v16\ns_nop 1")
    for k, (lo, hi) in enumerate([(32, 40), (33, 41), (36, 44), (37, 45)]):
        a("v_cndmask_b32 v%d, v%d, v%d, s[62:63]\nv_cndmask_b32 v%d, v%d, v%d, s[62:63]" % (48 + k, lo, hi, 24 + k, hi, lo))
    for k in range(4): a("v_bfi_b32 v%d, s58, v%d, v11" % (24 + k, 24 + k))
    a("s_mov_b64 exec, 0xffff\nglobal_store_dwordx4 v16, v[24:27], s[60:61] sc1\ns_mov_b64 exec, -1")
    a.label("L_aux_pq")
    stamp(3)
    a("s_lshl_b32 s34, s29, 13\ns_lshr_b32 s35, s30, 3\ns_lshl_b32 s35, s35, 12\ns_add_u32 s34, s34, s35")
    wsbase(60, "s34", QIN)
    a("v_lshlrev_b32 v16, 4, v0")
    poll([(64 + 4 * k, "global_load_dwordx4 %s, v16, s[60:61] offset:%d sc1" % (vr(64 + 4 * k, 4), 1024 * k)) for k in range(4)], "v18", "Q", poll_sleep)
    for i in range(4): a("v_add_f32 v%d, v%d, v%d\nv_add_f32 v%d, v%d, v%d" % (64 + i, 64 + i, 68 + i, 72 + i, 72 + i, 76 + i))
    for i in range(4): a("v_add_f32 v%d, v%d, v%d" % (64 + i, 64 + i, 72 + i))
    a("v_cvt_pk_bf16_f32 v64, v64, v65\nv_cvt_pk_bf16_f32 v65, v66, v67")
    a("v_and_b32 v17, 15, v0\nv_lshlrev_b32 v17, 1, v17\nv_lshl_add_u32 v17, v3, 7, v17")
    a("ds_write_b16 v17, v64 offset:%d\nds_write_b16_d16_hi v17, v64 offset:%d\nds_write_b16 v17, v65 offset:%d\nds_write_b16_d16_hi v17, v65 offset:%d" % (QV, QV + 32, QV + 64, QV + 96))
    setflag(FQ)
    stamp(4)
    a("s_cmp_ge_u32 s30, 13\ns_cbranch_scc1 L_rpath")
    a("v_and_b32 v16, 31, v0\nv_lshlrev_b32 v16, 2, v16\nv_lshrrev_b32 v17, 5, v0\ns_movk_i32 s34, 1152\nv_mad_u32_u24 v17, v17, s34, v16")
    for k in range(9):
        a("ds_read_b32 v%d, v17 offset:%d" % (64 + k, XS + 128 * k))
        if k == 6: a("s_waitcnt lgkmcnt(4)")
    for k in range(9):
        a("ds_read_b32 v%d, v16 offset:%d" % (76 + k, GW + 128 * k))
        if k in (2, 6): a("s_waitcnt lgkmcnt(6)")
    a("s_mov_b32 s35, 0xffff0000\nv_mov_b32 v18, 0\ns_waitcnt lgkmcnt(0)")
    for k in range(9):
        x, w = 64 + k, 76 + k
        a("v_lshlrev_b32 v20, 16, v%d\nv_and_b32 v21, s35, v%d\nv_lshlrev_b32 v22, 16, v%d\nv_and_b32 v23, s35, v%d" % (x, x, w, w))
        a("v_mul_f32 v20, v20, v22\nv_mul_f32 v21, v21, v23\nv_cvt_pk_bf16_f32 v20, v20, v21\nv_lshlrev_b32 v21, 16, v20\nv_and_b32 v20, s35, v20\nv_add_f32 v18, v18, v21\nv_add_f32 v18, v18, v20")
    a("s_nop 1")
    for sh in (1, 2, 4, 8):
        a("v_add_f32_dpp v18, v18, v18 row_ror:%d row_mask:0xf bank_mask:0xf\ns_nop 1" % sh)
    a("v_mov_b32 v19, v18\ns_nop 1\nv_permlane16_swap_b32 v18, v19\nv_add_f32 v18, v18, v19")
    a("v_cvt_pk_bf16_f32 v18, v18, v18\nv_and_b32 v18, s35, v18\nv_mul_f32 v18, 0x%x, v18\nv_exp_f32 v18, v18\ns_nop 0\nv_add_f32 v18, 1.0, v18\nv_rcp_f32 v18, v18\ns_nop 0" % f32bits(-math.log2(math.e)))
    a("v_cvt_pk_bf16_f32 v18, v18, v18\nv_and_b32 v18, s35, v18\nv_sub_f32 v19, 1.0, v18\nv_cvt_pk_bf16_f32 v19, v19, v19\nv_and_b32 v19, s35, v19")
    a("v_lshrrev_b32 v17, 5, v0\nv_lshlrev_b32 v17, 2, v17")
    a("s_cmp_lt_u32 s30, 4\ns_cbranch_scc1 L_aux_o")
    a("ds_write_b32 v17, v19 offset:%d" % GS)
    a("s_lshl_b32 s34, s32, 8")
    wsbase(60, "s34", HIN)
    a("v_and_b32 v16, 15, v0\nv_lshlrev_b32 v17, 1, v16\nv_lshlrev_b32 v16, 4, v16")
    poll([(64, "global_load_dwordx4 v[64:67], v16, s[60:61] sc1")], "v18", "H", poll_sleep)
    for k in range(4): a("v_add_f32 v%d, v%d, v%d\nv_max_f32 v%d, 0, v%d" % (64 + k, 64 + k, 48 + k, 64 + k, 64 + k))
    a("v_cvt_pk_bf16_f32 v64, v64, v65\nv_cvt_pk_bf16_f32 v65, v66, v67\ns_mov_b64 exec, 0xffff")
    a("ds_write_b16 v17, v64 offset:%d\nds_write_b16_d16_hi v17, v64 offset:%d\nds_write_b16 v17, v65 offset:%d\nds_write_b16_d16_hi v17, v65 offset:%d" % (AV, AV + 128, AV + 32, AV + 160))
    a("s_mov_b64 exec, -1")
    setflag(FA)
    a("s_branch L_young")
    a.label("L_aux_o")
    a("ds_write_b32 v17, v18 offset:%d" % GS)
    a("s_branch L_young")
    a.label("L_aux_late")
    a("s_cmp_lt_u32 s30, 4\ns_cbranch_scc0 L_gemv")
    a("s_lshl_b32 s34, s32, 12")
    wsbase(60, "s34", OIN)
    a("s_lshl_b32 s34, s32, 8")
    wsbase(62, "s34", MLIN)
    a("v_lshrrev_b32 v18, 5, v0\nv_and_b32 v19, 1, v3\nv_lshlrev_b32 v16, 11, v18\nv_lshl_add_u32 v16, v19, 8, v16\nv_and_b32 v20, 15, v0\nv_lshl_add_u32 v16, v20, 4, v16")
    a("v_lshlrev_b32 v17, 7, v18\nv_lshl_add_u32 v17, v19, 4, v17")
    a("v_lshlrev_b32 v21, 7, v18\nv_bfe_u32 v19, v0, 3, 1\nv_lshl_add_u32 v21, v19, 6, v21\nv_and_b32 v19, 7, v0\nv_lshl_add_u32 v21, v19, 1, v21")
    a("s_waitcnt lgkmcnt(0)")
    stamp(5)
    OD, OM = 96, 112
    poll([(OM + 4 * k, "global_load_dwordx4 %s, v17, s[62:63] offset:%d sc1" % (vr(OM + 4 * k, 4), 32 * k)) for k in range(4)] +
         [(OD + 4 * k, "global_load_dwordx4 %s, v16, s[60:61] offset:%d sc1" % (vr(OD + 4 * k, 4), 512 * k)) for k in range(4)], "v18", "O", poll_sleep)
    stamp(6)
    a("v_max3_f32 v24, v%d, v%d, v%d\nv_max_f32 v24, v24, v%d" % (OM, OM + 4, OM + 8, OM + 12))
    a("v_mov_b32 v25, v24\ns_nop 1\nv_permlane16_swap_b32 v24, v25\nv_max_f32 v24, v24, v25")
    for k in range(4): a("v_sub_f32 v%d, v%d, v24" % (OM + 4 * k, OM + 4 * k))
    for k in range(4): a("v_exp_f32 v%d, v%d" % (OM + 4 * k, OM + 4 * k))
    a("s_nop 0\nv_mul_f32 v28, v%d, v%d" % (OM, OM + 1))
    for k in range(1, 4): a("v_fmac_f32 v28, v%d, v%d" % (OM + 4 * k, OM + 4 * k + 1))
    for i in range(4): a("v_mul_f32 v%d, v%d, v%d" % (24 + i, OM, OD + i))
    for k in range(1, 4):
        for i in range(4): a("v_fmac_f32 v%d, v%d, v%d" % (24 + i, OM + 4 * k, OD + 4 * k + i))
    for i in range(5): a("v_mov_b32 v%d, v%d" % (32 + i, 24 + i))
    for i in range(5): a("v_permlane16_swap_b32 v%d, v%d" % (24 + i, 32 + i))
    for i in range(5): a("v_add_f32 v%d, v%d, v%d" % (24 + i, 24 + i, 32 + i))
    a("v_rcp_f32 v28, v28\ns_nop 0")
    for i in range(4): a("v_mul_f32 v%d, v%d, v28" % (24 + i, 24 + i))
    a("v_cvt_pk_bf16_f32 v24, v24, v25\nv_cvt_pk_bf16_f32 v25, v26, v27")
    a("ds_write_b16 v21, v24 offset:%d\nds_write_b16_d16_hi v21, v24 offset:%d\nds_write_b16 v21, v25 offset:%d\nds_write_b16_d16_hi v21, v25 offset:%d" % (AV, AV + 16, AV + 32, AV + 48))
    setflag(FA)
    a("s_branch L_gemv")

    a.label("L_fin")
    if stamps:
        stamp(10)
        a("s_mul_i32 s34, s2, 9\ns_add_u32 s34, s34, s3\ns_lshl_b32 s34, s34, 7")
        wsbase(60, "s34", 0x8000000)
        a("s_mov_b64 exec, 1")
        for k in range(11):
            a("v_mov_b32 v12, s%d\nv_mov_b32 v13, s%d\nglobal_store_dwordx2 v1, v[12:13], s[60:61] offset:%d\ns_nop 1" % (64 + 2 * k, 65 + 2 * k, 8 * k))
    a.label("L_end")
    a("s_endpgm")
    return wrap(a.text(), 256, 576, LDS_TOTAL, 160)

if __name__ == "__main__":
    open("v1.s", "w").write(gen())
    open("v1s.s", "w").write(gen(stamps=True))
    open("v1_nont.s", "w").write(gen(nt=""))
```

```python
import sys, math, struct
from asmlib import *

FQ, FA, FW, CA, CR, FS0, FS1, CI = 0, 4, 8, 64, 68, 72, 76, 80
QV, AV, GS, XS, GW = 256, 768, 1024, 2048, 5120
ACC, ML, WQ, W1, WBF, WBO, LDS_TOTAL = 8192, 16384, 20480, 40960, 77824, 40960, 114688
QIN, HIN, OIN, MLIN, RIN = 0x1000, 0x40000, 0x80000, 0xC8000, 0x100000
RSTRIDE = 208 * 128
CSC = math.log2(math.e) / math.sqrt(128.0)
def f32bits(x): return struct.unpack("<I", struct.pack("<f", x))[0]
NW = 11
NST = 12

def gen(nt=" nt", ntw=None, stamps=False, pf=True, poll_sleep=1, rsleep=2, ldepth=20, kvdepth=0, look=6, rot=True, w1depth=24, fs1wait=8, ogate=True, ldepthF=None):
    if ldepthF is None: ldepthF = ldepth
    if ntw is None: ntw = nt
    a = Asm()
    def stamp(k):
        if stamps:
            a("s_memrealtime s[%d:%d]\ns_waitcnt lgkmcnt(0)" % (64 + 2 * k, 65 + 2 * k))
    def srd(d, p, n):
        a("s_mov_b32 s%d, s%d\ns_mov_b32 s%d, s%d\ns_mov_b32 s%d, 0x%x\ns_mov_b32 s%d, 0x20000" % (d, p, d + 1, p + 1, d + 2, n, d + 3))
    def wsbase(d, s_off, const):
        a("s_add_u32 s%d, %s, 0x%x\ns_add_u32 s%d, s26, s%d\ns_addc_u32 s%d, s27, 0" % (d, s_off, const, d, d, d + 1))
    def spin(flag_off, vtmp="v2", vzero="v1", val=None, sleep=1):
        l = a.newlabel("L_spin"); d = a.newlabel("L_spun")
        a.label(l)
        a("ds_read_b32 %s, %s offset:%d\ns_waitcnt lgkmcnt(0)\nv_readfirstlane_b32 s34, %s" % (vtmp, vzero, flag_off, vtmp))
        a("s_cmp_lg_u32 s34, 0" if val is None else "s_cmp_eq_u32 s34, %d" % val)
        a("s_cbranch_scc1 %s\ns_sleep %d\ns_branch %s" % (d, sleep, l))
        a.label(d)
    def setflag(flag_off, vone="v2", vzero="v1"):
        a("v_mov_b32 %s, 1\nds_write_b32 %s, %s offset:%d" % (vone, vzero, vone, flag_off))
    def xor_reduce(op, regs, tmps):
        for sw in ("v_permlane16_swap_b32", "v_permlane32_swap_b32"):
            for r, t in zip(regs, tmps): a("v_mov_b32 %s, %s" % (t, r))
            pad = max(0, 2 - (len(regs) - 1))
            if pad: a("s_nop %d" % (pad - 1))
            for r, t in zip(regs, tmps): a("%s %s, %s" % (sw, r, t))
            for r, t in zip(regs, tmps): a("%s %s, %s, %s" % (op, r, r, t))
    def poll(loads, vacc, lbl, sleep):
        l = a.newlabel("L_poll" + lbl); d = a.newlabel("L_polled" + lbl)
        a("s_mov_b32 s59, 0")
        a.label(l)
        for ld_ in loads: a(ld_[1])
        a("s_waitcnt vmcnt(0)")
        regs = [ld_[0] + k for ld_ in loads for k in range(ld_[2] if len(ld_) > 2 else 4)]
        for r in regs: a("v_xor_b32 v%d, s57, v%d" % (r, r))
        a("v_or3_b32 %s, v%d, v%d, v%d" % (vacc, regs[0], regs[1], regs[2]))
        rest = regs[3:]
        while rest:
            if len(rest) >= 2:
                a("v_or3_b32 %s, %s, v%d, v%d" % (vacc, vacc, rest[0], rest[1])); rest = rest[2:]
            else:
                a("v_or_b32 %s, %s, v%d" % (vacc, vacc, rest[0])); rest = rest[1:]
        a("v_and_b32 %s, 0xff, %s\nv_cmp_ne_u32 vcc, 0, %s" % (vacc, vacc, vacc))
        a("s_cbranch_vccz %s" % d)
        a("s_add_u32 s59, s59, 1\ns_cmp_lt_u32 s59, 0x8000\ns_cbranch_scc0 %s" % d)
        if sleep: a("s_sleep %d" % sleep)
        a("s_branch %s" % l)
        a.label(d)
        if stamps: a("s_mov_b32 s%d, s59" % (90 + {"Q": 0, "H": 1, "O": 2, "R": 3}[lbl]))
    def tag_setup():
        a("s_waitcnt lgkmcnt(0)\ns_add_u32 s57, s56, 1\ns_and_b32 s57, s57, 0xff\nv_mov_b32 v11, s57")
    def gemv1(nsteps, wbase, s_k0bytes, acc, vm_after):
        a("s_movk_i32 s34, 1152\nv_mul_lo_u32 v16, v10, s34\nv_lshl_add_u32 v16, v3, 4, v16\nv_add_u32 v16, %s, v16" % s_k0bytes)
        for T in range(4): a("v_add_u32 v%d, %d, v%d" % (20 + T, wbase, 12 + T))
        units = [(tau, T) for tau in range(nsteps) for T in range(4)]
        AB = [24, 28, 100]
        NB = look + 1
        BB = [64 + 4 * k for k in range(NB)]
        q = []
        def issue(u):
            tau, T = units[u]
            if T == 0:
                w = vm_after(tau)
                if w is not None: a("s_waitcnt vmcnt(%d)" % w)
                a("ds_read_b128 %s, v16 offset:%d" % (vr(AB[tau % 3], 4), XS + tau * 64)); q.append(("A", tau))
            for eta in range(2):
                a("ds_read_b64_tr_b16 %s, v%d offset:%d" % (vr(BB[u % NB] + 2 * eta, 2), 20 + T, tau * 4096 + eta * 512)); q.append(("B", u))
            assert len(q) <= 15
        for u in range(min(look, len(units))): issue(u)
        for u in range(len(units)):
            tau, T = units[u]
            last = max(k for k, e in enumerate(q) if e == ("B", u))
            a("s_waitcnt lgkmcnt(%d)" % (len(q) - 1 - last))
            del q[:last + 1]
            a("v_mfma_f32_16x16x32_bf16 %s, %s, %s, %s" % (vr(acc + 4 * T, 4), vr(AB[tau % 3], 4), vr(BB[u % NB], 4), "0" if tau == 0 else vr(acc + 4 * T, 4)))
            if u + look < len(units): issue(u + look)

    if stamps:
        a("s_memrealtime s[64:65]")
        for k in range(1, NST): a("s_mov_b64 s[%d:%d], 0" % (64 + 2 * k, 65 + 2 * k))
        a("s_mov_b64 s[90:91], 0\ns_mov_b64 s[92:93], 0")
    a("s_cmp_ge_u32 s2, 256\ns_cbranch_scc1 L_end")
    a("s_load_dwordx16 s[4:19], s[0:1], 0\ns_load_dwordx8 s[20:27], s[0:1], 64")
    a("v_lshrrev_b32 v1, 6, v0\nv_and_b32 v0, 63, v0\ns_and_b32 s28, s2, 7\nv_readfirstlane_b32 s3, v1")
    a("s_lshl_b32 s28, s28, 5\ns_lshr_b32 s29, s2, 3\ns_add_u32 s28, s28, s29")
    a("s_lshr_b32 s29, s28, 4\ns_and_b32 s30, s28, 15")
    a("v_mov_b32 v1, 0\nv_lshrrev_b32 v3, 4, v0")
    a("s_cmp_lg_u32 s3, 0\ns_cbranch_scc1 L_noinit")
    a("v_lshlrev_b32 v2, 2, v0\nds_write_b32 v2, v1\ns_waitcnt lgkmcnt(0)")
    a.label("L_noinit")
    a("s_barrier")
    a("s_mov_b32 s58, 0xffffff00")
    a("s_lshl_b32 s32, s29, 2\ns_add_u32 s32, s32, s30\ns_mov_b32 s33, s32")
    a("s_cmp_lt_u32 s30, 4\ns_cbranch_scc1 L_roled")
    a("s_mul_i32 s32, s29, 9\ns_add_u32 s32, s32, s30\ns_sub_u32 s32, s32, 4\ns_add_u32 s33, s32, 64")
    a("s_cmp_lt_u32 s30, 13\ns_cbranch_scc1 L_roled")
    a("s_mul_i32 s32, s29, 3\ns_add_u32 s32, s32, s30\ns_sub_u32 s32, s32, 13")
    a.label("L_roled")
    a("v_lshrrev_b32 v4, 3, v0\nv_and_b32 v5, 7, v0\nv_and_b32 v6, 2, v4\nv_xor_b32 v5, v5, v6\nv_lshlrev_b32 v5, 4, v5\nv_xor_b32 v6, 64, v5")
    a("s_cmp_eq_u32 s3, 8\ns_cbranch_scc1 L_qaux")
    a.label("L_common2")
    a("v_bfe_u32 v7, v0, 2, 2\nv_lshl_add_u32 v8, v3, 3, v7\nv_lshlrev_b32 v8, 7, v8\nv_and_b32 v9, 3, v0\nv_lshl_add_u32 v8, v9, 3, v8")
    a("v_and_b32 v9, 1, v3\nv_lshlrev_b32 v9, 1, v9\nv_lshrrev_b32 v7, 1, v7\nv_or_b32 v9, v9, v7\nv_lshlrev_b32 v9, 5, v9")
    for T in range(4):
        a("v_xor_b32 v%d, %d, v9\nv_add_u32 v%d, v%d, v8" % (12 + T, T * 32, 12 + T, 12 + T))
    a("v_lshrrev_b32 v10, 2, v0\nv_xor_b32 v10, v10, v0\nv_and_b32 v10, 1, v10")
    a("s_cmp_eq_u32 s3, 8\ns_cbranch_scc1 L_qaux2")
    a("s_cmp_eq_u32 s3, 9\ns_cbranch_scc1 L_haux")
    a("s_cmp_eq_u32 s3, 10\ns_cbranch_scc1 L_loader")

    if pf:
        a("s_cmp_lg_u32 s3, 7\ns_cbranch_scc1 L_nopf")
        a("s_getpc_b64 s[60:61]")
        a.label("L_pfbase")
        a("v_lshlrev_b32 v2, 7, v0\nv_min_u32 v2, L_end-L_pfbase, v2\nglobal_load_dword v158, v2, s[60:61]\nv_add_u32 v2, 0x2000, v2\nv_min_u32 v2, L_end-L_pfbase, v2\nglobal_load_dword v159, v2, s[60:61]")
        a.label("L_nopf")
    a("v_bfe_u32 v16, v0, 2, 2\nv_lshlrev_b32 v16, 8, v16\nv_lshl_add_u32 v16, v3, 6, v16\nv_and_b32 v17, 3, v0\nv_lshl_add_u32 v16, v17, 4, v16")
    a("v_lshlrev_b32 v17, 4, v0")
    a("s_lshr_b32 s34, s30, 3\ns_lshl_b32 s34, s34, 4\ns_add_u32 s34, s34, s29\ns_lshl_b32 s34, s34, 13\ns_add_u32 s34, s34, 6144")
    a("s_and_b32 s35, s30, 7\ns_lshl_b32 s35, s35, 8\ns_add_u32 s34, s34, s35\ns_lshl_b32 s35, s3, 5\ns_add_u32 s34, s34, s35\ns_lshl_b32 s36, s34, 8")
    a("s_add_u32 s37, s28, s3")
    for t in range(8):
        a("s_add_u32 s34, s37, %d\ns_and_b32 s34, s34, 7\ns_lshl_b32 s34, s34, 10\ns_add_u32 s%d, s34, s36" % (t if rot else 0, 48 + t) if rot else "s_add_u32 s%d, s36, %d" % (48 + t, t * 1024))
    a("v_bfe_u32 v18, v0, 3, 1\nv_lshlrev_b32 v18, 8, v18\nv_lshl_add_u32 v18, v3, 6, v18\nv_and_b32 v19, 3, v0\nv_lshl_add_u32 v18, v19, 4, v18")
    a("v_and_b32 v19, 1, v0\nv_lshlrev_b32 v19, 4, v19\nv_mov_b32 v24, 0xffff\nv_lshlrev_b32 v24, v19, v24\nv_bfe_u32 v19, v0, 1, 2")
    for i in range(4):
        a("v_cmp_eq_u32 vcc, %d, v19\ns_nop 1\nv_cndmask_b32 v%d, 0, v24, vcc" % (i, 20 + i))
    a("s_mov_b32 s38, 0x%x" % f32bits(CSC))
    a("s_waitcnt lgkmcnt(0)")
    a("s_load_dword s56, s[26:27], 0")
    srd(40, 6, 64 << 20); srd(44, 8, 64 << 20)
    a("s_setprio 1")
    spin(FS1, sleep=0)
    stamp(1)
    KR, VR, DR = 64, 96, 128
    for t in range(16):
        if kvdepth and t >= kvdepth: a("s_waitcnt vmcnt(%d)" % (kvdepth - 1))
        if t < 8:
            a("buffer_load_dwordx4 %s, v16, s[40:43], s%d offen%s" % (vr(KR + 4 * t, 4), 48 + t, nt))
        else:
            a("buffer_load_dwordx4 %s, v17, s[44:47], s%d offen%s" % (vr(VR + 4 * (t - 8), 4), 48 + t - 8, nt))
    a("v_mov_b32 v2, 1\ns_mov_b64 exec, 1\nds_add_u32 v1, v2 offset:%d\ns_mov_b64 exec, -1" % CI)
    stamp(2)
    tag_setup()
    spin(FQ)
    stamp(3)
    a("ds_read_b128 v[24:27], v18 offset:%d\ns_waitcnt lgkmcnt(0)" % QV)
    for t in range(8):
        a("s_waitcnt vmcnt(%d)\nv_mfma_f32_16x16x32_bf16 %s, %s, v[24:27], 0" % (15 - t, vr(DR + 4 * t, 4), vr(KR + 4 * t, 4)))
    a("s_nop 7")
    S = 32
    for t in range(8): a("v_mov_b32_dpp v%d, v%d quad_perm:[0,0,0,0] row_mask:0xf bank_mask:0xf" % (S + t, DR + 4 * t))
    for i in range(1, 4):
        for t in range(8):
            a("v_add_f32_dpp v%d, v%d, v%d quad_perm:[%d,%d,%d,%d] row_mask:0xf bank_mask:0xf" % (S + t, DR + 4 * t + i, S + t, i, i, i, i))
    a("v_max3_f32 v28, v32, v33, v34\nv_max3_f32 v28, v28, v35, v36\nv_max3_f32 v28, v28, v37, v38\nv_max_f32 v28, v28, v39")
    xor_reduce("v_max_f32", ["v28"], ["v30"])
    a("v_mul_f32 v28, s38, v28")
    for t in range(8): a("v_fma_f32 v%d, v%d, s38, -v28" % (S + t, S + t))
    for t in range(8): a("v_exp_f32 v%d, v%d" % (S + t, S + t))
    a("s_nop 0")
    for t in range(8): a("v_cvt_pk_bf16_f32 v%d, v%d, v%d" % (40 + t, S + t, S + t))
    for t in range(8):
        for i in range(4): a("v_and_b32 v%d, v%d, v%d" % (DR + 4 * t + i, 40 + t, 20 + i))
    a("v_add_f32 v29, v32, v33\nv_add_f32 v30, v34, v35\nv_add_f32 v31, v36, v37\nv_add_f32 v32, v38, v39\nv_add_f32 v29, v29, v30\nv_add_f32 v31, v31, v32\nv_add_f32 v29, v29, v31")
    xor_reduce("v_add_f32", ["v29"], ["v30"])
    a("s_lshl_b32 s34, s3, 10\nv_lshl_add_u32 v30, v0, 4, s34\ns_lshl_b32 s34, s3, 9\nv_lshl_add_u32 v31, v0, 3, s34")
    a("ds_write_b64 v31, v[28:29] offset:%d" % ML)
    stamp(4)
    for t in range(8):
        a("s_waitcnt vmcnt(%d)\nv_mfma_f32_16x16x32_bf16 v[24:27], %s, %s, %s" % (7 - t, vr(VR + 4 * t, 4), vr(DR + 4 * t, 4), "0" if t == 0 else "v[24:27]"))
    a("v_mov_b32 v2, 1\ns_nop 6")
    a("ds_write_b128 v30, v[24:27] offset:%d" % ACC)
    a("s_mov_b64 exec, 1\nds_add_rtn_u32 v2, v1, v2 offset:%d\ns_mov_b64 exec, -1" % CA)
    a("v_lshlrev_b32 v30, 4, v0\nv_lshlrev_b32 v31, 3, v0")
    a("v_bfe_u32 v34, v0, 3, 1\nv_lshlrev_b32 v32, 13, v34\nv_lshrrev_b32 v35, 1, v3\nv_lshl_add_u32 v32, v35, 12, v32\nv_and_b32 v36, 1, v3\nv_lshl_add_u32 v32, v36, 7, v32\nv_and_b32 v36, 7, v0\nv_lshl_add_u32 v32, v36, 4, v32")
    a("v_lshlrev_b32 v33, 7, v34")
    a("s_waitcnt lgkmcnt(0)\nv_readfirstlane_b32 s34, v2")
    stamp(5)
    a("s_cmp_lg_u32 s34, 7\ns_cbranch_scc1 L_att_done")
    for w in range(8): a("ds_read_b64 %s, v31 offset:%d" % (vr(40 + 2 * w, 2), ML + w * 512))
    for w in range(7): a("ds_read_b128 %s, v30 offset:%d" % (vr(KR + 4 * w, 4), ACC + w * 1024))
    a("s_lshl_b32 s34, s29, 14\ns_lshl_b32 s35, s30, 8\ns_add_u32 s34, s34, s35")
    wsbase(60, "s34", OIN)
    a("s_lshl_b32 s34, s29, 8\ns_lshl_b32 s35, s30, 3\ns_add_u32 s34, s34, s35")
    wsbase(62, "s34", MLIN)
    a("s_waitcnt lgkmcnt(7)")
    a("ds_read_b128 %s, v30 offset:%d" % (vr(KR + 28, 4), ACC + 7 * 1024))
    a("v_max3_f32 v28, v40, v42, v44\nv_max3_f32 v28, v28, v46, v48\nv_max3_f32 v28, v28, v50, v52\nv_max_f32 v28, v28, v54\nv_and_b32 v28, s58, v28")
    for w in range(8): a("v_sub_f32 v%d, v%d, v28" % (40 + 2 * w, 40 + 2 * w))
    for w in range(8): a("v_exp_f32 v%d, v%d" % (40 + 2 * w, 40 + 2 * w))
    a("s_waitcnt lgkmcnt(0)")
    for i in range(4): a("v_mul_f32 v%d, v40, v%d" % (24 + i, KR + i))
    for w in range(1, 8):
        for i in range(4): a("v_fmac_f32 v%d, v%d, v%d" % (24 + i, 40 + 2 * w, KR + 4 * w + i))
    for i in range(4): a("v_bfi_b32 v%d, s58, v%d, v11" % (24 + i, 24 + i))
    a("global_store_dwordx4 v32, v[24:27], s[60:61] sc1")
    a("v_mul_f32 v29, v40, v41")
    for w in range(1, 8): a("v_fmac_f32 v29, v%d, v%d" % (40 + 2 * w, 41 + 2 * w))
    a("v_bfi_b32 v36, s58, v28, v11\nv_bfi_b32 v37, s58, v29, v11")
    a("s_mov_b64 exec, 0x101")
    a("global_store_dwordx2 v33, v[36:37], s[62:63] sc1")
    a("s_mov_b64 exec, -1")
    a.label("L_att_done")
    stamp(6)
    a("s_cmp_ge_u32 s30, 13\ns_cbranch_scc1 L_rpath")
    a("s_lshl_b32 s34, s3, 2\nv_mov_b32 v16, s34")
    spin(FW, vzero="v16")
    a("s_mov_b32 s39, s3")
    a.label("L_frag")
    stamp(7)
    BF = 64
    a("s_cmp_lt_u32 s30, 4\ns_cbranch_scc0 L_fragF")
    def frags(role):
        n = 8 if role == "O" else 4
        wb = WBO if role == "O" else WBF
        a("s_mul_i32 s34, s39, %d\ns_add_u32 s34, s34, %d" % (n * 1024, wb))
        for T in range(4): a("v_add_u32 v%d, s34, v%d" % (16 + T, 12 + T))
        cnt = 0
        for tau in range(n // 4):
            for T in range(4):
                for eta in range(2):
                    if cnt == 14: a("s_waitcnt lgkmcnt(6)"); cnt = 6
                    a("ds_read_b64_tr_b16 %s, v%d offset:%d" % (vr(BF + tau * 16 + T * 4 + eta * 2, 2), 16 + T, tau * 4096 + eta * 512)); cnt += 1
    frags("O")
    a("s_branch L_frag2")
    a.label("L_fragF")
    frags("F")
    a.label("L_frag2")
    a("v_bfe_u32 v20, v0, 3, 2\ns_mov_b32 s34, %d\nv_and_b32 v21, 7, v0\nv_lshlrev_b32 v21, 4, v21\nv_mad_u32_u24 v20, v20, s34, v21" % RSTRIDE)
    a("v_lshlrev_b32 v21, 7, v10\nv_lshl_add_u32 v21, v3, 4, v21\nv_and_b32 v22, 1, v3\nv_lshlrev_b32 v22, 2, v22")
    a("s_mul_i32 s34, s39, %d\ns_lshl_b32 s35, s33, 7\ns_add_u32 s34, s34, s35" % (4 * RSTRIDE))
    wsbase(60, "s34", RIN)
    spin(FA, val=2)
    stamp(8)
    a("ds_read_b128 v[24:27], v21 offset:%d\nds_read_b128 v[28:31], v21 offset:%d\nds_read_b32 v23, v22 offset:%d" % (AV, AV + 64, GS))
    a("s_waitcnt lgkmcnt(2)")
    for T in range(4): a("v_mfma_f32_16x16x32_bf16 %s, v[24:27], %s, 0" % (vr(32 + 4 * T, 4), vr(BF + 4 * T, 4)))
    a("s_cmp_lt_u32 s30, 4\ns_cbranch_scc0 L_gemv1")
    a("s_waitcnt lgkmcnt(1)")
    for T in range(4): a("v_mfma_f32_16x16x32_bf16 %s, v[28:31], %s, %s" % (vr(32 + 4 * T, 4), vr(BF + 16 + 4 * T, 4), vr(32 + 4 * T, 4)))
    a.label("L_gemv1")
    a("s_waitcnt lgkmcnt(0)\ns_nop 5")
    for T in range(4): a("v_mul_f32 v%d, v23, v%d" % (24 + T, 32 + 4 * T))
    for T in range(4): a("v_bfi_b32 v%d, s58, v%d, v11" % (24 + T, 24 + T))
    a("s_mov_b32 exec_hi, 0\nglobal_store_dwordx4 v20, v[24:27], s[60:61] sc1\ns_mov_b64 exec, -1")
    stamp(9)
    a("s_branch L_fin")

    a.label("L_loader")
    a("s_cmp_ge_u32 s30, 13\ns_cbranch_scc1 L_fin")
    a("s_movk_i32 s34, 1152\nv_mad_u32_u24 v16, v4, s34, v5\nv_mad_u32_u24 v17, v4, s34, v6\nv_mov_b32 v18, 1")
    a("s_waitcnt lgkmcnt(0)\ns_load_dword s56, s[26:27], 0")
    a("s_cmp_lt_u32 s30, 4\ns_cbranch_scc0 L_ldF")
    def wload(role):
        n = 8 if role == "O" else 4
        wb = WBO if role == "O" else WBF
        if role == "O": srd(48, 12, 4096 * 576 * 2)
        else: srd(48, 18, 4608 * 576 * 2)
        a("s_mul_i32 s36, s32, %d\ns_mov_b32 m0, %d" % (n * 8 * 1152, wb))
        tag_setup()
        spin(CI, val=8, sleep=2)
        stamp(1)
        tot = 9 * n
        flagged = 0
        ld = ldepth if role == "O" else ldepthF
        for k in range(tot):
            s_, rg = divmod(k, n)
            if k >= ld:
                a("s_waitcnt vmcnt(%d)" % (ld - 1))
                done = k - ld + 1
                while (flagged + 1) * n <= done:
                    a("ds_write_b32 v1, v18 offset:%d" % (FW + 4 * flagged)); flagged += 1
            a("buffer_load_dwordx4 %s, s[48:51], s36 offen%s lds" % ("v16" if rg % 2 == 0 else "v17", ntw))
            if k < tot - 1:
                a("s_add_u32 m0, m0, 1024")
                if rg < n - 1: a("s_add_u32 s36, s36, %d" % (8 * 1152))
                else: a("s_sub_u32 s36, s36, %d" % ((n - 1) * 8 * 1152 - 128))
        stamp(2)
        while flagged < 8:
            a("s_waitcnt vmcnt(%d)\nds_write_b32 v1, v18 offset:%d" % (tot - (flagged + 1) * n, FW + 4 * flagged)); flagged += 1
        a("s_mov_b32 s39, 8\ns_waitcnt vmcnt(0)")
        a("s_branch L_frag")
    wload("O")
    a.label("L_ldF")
    wload("F")

    a.label("L_rpath")
    a("s_cmp_ge_u32 s32, 36\ns_cbranch_scc1 L_fin")
    a("s_mul_i32 s34, s32, %d\ns_mul_i32 s35, s3, 3072\ns_add_u32 s34, s34, s35" % RSTRIDE)
    wsbase(60, "s34", RIN)
    a("v_lshlrev_b32 v16, 4, v0\ns_cmp_eq_u32 s3, 8\ns_cselect_b32 s35, 1, 2\ns_cselect_b32 s36, 0, 1.0\ns_lshl_b32 s35, s35, 10\nv_add_u32 v17, s35, v16")
    poll([(32, "global_load_dwordx4 v[32:35], v16, s[60:61] sc1"),
          (36, "global_load_dwordx4 v[36:39], v16, s[60:61] offset:1024 sc1"),
          (40, "global_load_dwordx4 v[40:43], v17, s[60:61] sc1")], "v18", "R", rsleep)
    stamp(8)
    for i in range(4): a("v_add_f32 v%d, v%d, v%d" % (32 + i, 32 + i, 36 + i))
    for i in range(4): a("v_fma_f32 v%d, v%d, s36, v%d" % (32 + i, 40 + i, 32 + i))
    a("s_nop 0")
    for i in range(4): a("v_add_f32_dpp v%d, v%d, v%d row_ror:8 row_mask:0xf bank_mask:0xf" % (32 + i, 32 + i, 32 + i))
    xor_reduce("v_add_f32", ["v32", "v33", "v34", "v35"], ["v36", "v37", "v38", "v39"])
    a("v_and_b32 v16, 7, v0\nv_lshlrev_b32 v16, 4, v16\ns_lshl_b32 s34, s3, 7\nv_add_u32 v17, s34, v16\nv_mov_b32 v2, 1")
    a("ds_write_b128 v17, v[32:35] offset:%d" % WQ)
    a("s_mov_b64 exec, 1\nds_add_rtn_u32 v2, v1, v2 offset:%d\ns_mov_b64 exec, -1" % CR)
    a("s_lshr_b32 s34, s32, 2\ns_lshl_b32 s34, s34, 7\ns_bfe_u32 s35, s32, 0x10001\ns_mul_i32 s35, s35, 1152\ns_add_u32 s34, s34, s35\ns_and_b32 s35, s32, 1\ns_lshl_b32 s35, s35, 4\ns_add_u32 s34, s34, s35")
    a("v_lshrrev_b32 v17, 3, v16\nv_add_u32 v17, s34, v17")
    a("s_waitcnt lgkmcnt(0)\nv_readfirstlane_b32 s34, v2")
    a("s_cmp_lg_u32 s34, 8\ns_cbranch_scc1 L_fin")
    for w in range(9): a("ds_read_b128 %s, v16 offset:%d" % (vr(64 + 4 * w, 4), WQ + w * 128))
    for w in range(1, 9):
        a("s_waitcnt lgkmcnt(%d)" % (8 - w))
        a("v_pk_add_f32 v[64:65], v[64:65], %s\nv_pk_add_f32 v[66:67], v[66:67], %s" % (vr(64 + 4 * w, 2), vr(66 + 4 * w, 2)))
    a("v_cvt_pk_bf16_f32 v32, v64, v65\nv_cvt_pk_bf16_f32 v33, v66, v67")
    a("s_mov_b64 exec, 0xff")
    a("global_store_short v17, v32, s[22:23]\nglobal_store_short_d16_hi v17, v32, s[22:23] offset:32\nglobal_store_short v17, v33, s[22:23] offset:64\nglobal_store_short_d16_hi v17, v33, s[22:23] offset:96")
    a("s_cmp_lg_u32 s32, 0\ns_cbranch_scc1 L_rdone")
    a("s_add_u32 s34, s56, 1\nv_mov_b32 v2, s34\ns_mov_b64 exec, 1\nglobal_store_dword v1, v2, s[26:27]")
    a.label("L_rdone")
    a("s_mov_b64 exec, -1")
    stamp(9)
    a("s_branch L_fin")

    a.label("L_qaux")
    a("s_setprio 3")
    a("v_lshl_add_u32 v17, v4, 13, v5\nv_lshl_add_u32 v18, v4, 13, v6\nv_lshlrev_b32 v16, 4, v0")
    a("s_and_b32 s34, s28, 3\ns_mul_i32 s36, s34, %d\ns_lshr_b32 s35, s28, 2\ns_lshl_b32 s35, s35, 7\ns_add_u32 s36, s36, s35" % (144 * 8192))
    a("s_mov_b32 m0, %d\ns_waitcnt lgkmcnt(0)" % XS)
    srd(40, 4, 2304)
    for k in range(3): a("buffer_load_dwordx4 v16, s[40:43], 0 offen offset:%d lds" % (k * 1024))
    srd(48, 10, 576 * 4096 * 2)
    a("s_mov_b32 m0, %d\ns_load_dword s56, s[26:27], 0" % WQ)
    for rg in range(18):
        a("buffer_load_dwordx4 %s, s[48:51], s36 offen%s lds" % ("v17" if rg % 2 == 0 else "v18", ntw))
        if rg < 17: a("s_add_u32 m0, m0, 1024\ns_add_u32 s36, s36, %d" % (8 * 8192))
    setflag(FS0)
    a("v_mov_b32 v20, 0\nv_mov_b32 v21, 0\nv_mov_b32 v22, 0\nv_mov_b32 v23, 0")
    a("ds_write_b128 v16, v[20:23] offset:%d\nds_write_b128 v16, v[20:23] offset:%d" % (WQ + 144 * 128, WQ + 152 * 128))
    a("s_branch L_common2")
    a.label("L_qaux2")
    stamp(1)
    tag_setup()
    a("v_and_b32 v16, 15, v0\nv_lshlrev_b32 v16, 4, v16\nv_lshl_add_u32 v17, v3, 12, v16")
    a("s_lshl_b32 s34, s29, 13\ns_and_b32 s35, s28, 3\ns_lshl_b32 s35, s35, 10\ns_add_u32 s34, s34, s35\ns_bfe_u32 s35, s28, 0x20002\ns_lshl_b32 s35, s35, 8\ns_add_u32 s34, s34, s35")
    wsbase(60, "s34", QIN)
    a("s_lshl_b32 s34, s29, 13\ns_lshr_b32 s35, s30, 3\ns_lshl_b32 s35, s35, 12\ns_add_u32 s34, s34, s35")
    wsbase(62, "s34", QIN)
    a("s_and_b32 s35, s28, 3\ns_mul_i32 s35, s35, 288")
    gemv1(5, WQ, "s35", 32, lambda tau: max(0, 18 - 4 * (tau + 1)))
    setflag(FS0 + 16)
    stamp(2)
    a("s_nop 3")
    for T in range(4): a("v_bfi_b32 v%d, s58, v%d, v11" % (24 + T, 32 + 4 * T))
    a("s_mov_b32 exec_hi, 0\nglobal_store_dwordx4 v17, v[24:27], s[60:61] sc1\ns_mov_b64 exec, -1")
    stamp(3)
    a("v_lshlrev_b32 v16, 4, v0")
    a("v_and_b32 v17, 15, v0\nv_lshlrev_b32 v17, 1, v17\nv_lshl_add_u32 v17, v3, 7, v17")
    poll([(64 + 4 * k, "global_load_dwordx4 %s, v16, s[62:63] offset:%d sc1" % (vr(64 + 4 * k, 4), 1024 * k)) for k in range(4)], "v18", "Q", poll_sleep)
    for i in range(4): a("v_add_f32 v%d, v%d, v%d\nv_add_f32 v%d, v%d, v%d" % (64 + i, 64 + i, 68 + i, 72 + i, 72 + i, 76 + i))
    for i in range(4): a("v_add_f32 v%d, v%d, v%d" % (64 + i, 64 + i, 72 + i))
    a("v_cvt_pk_bf16_f32 v64, v64, v65\nv_cvt_pk_bf16_f32 v65, v66, v67")
    a("ds_write_b16 v17, v64 offset:%d\nds_write_b16_d16_hi v17, v64 offset:%d\nds_write_b16 v17, v65 offset:%d\nds_write_b16_d16_hi v17, v65 offset:%d" % (QV, QV + 32, QV + 64, QV + 96))
    setflag(FQ)
    stamp(4)
    a("s_cmp_ge_u32 s30, 13\ns_cbranch_scc1 L_rpath")
    a("s_cmp_lt_u32 s30, 4\ns_cbranch_scc0 L_fin")
    a("s_lshl_b32 s34, s32, 12")
    wsbase(60, "s34", OIN)
    a("s_lshr_b32 s34, s32, 1\ns_lshl_b32 s34, s34, 7")
    wsbase(62, "s34", MLIN)
    a("v_lshrrev_b32 v18, 5, v0\nv_and_b32 v19, 1, v3\nv_lshlrev_b32 v16, 11, v18\nv_lshl_add_u32 v16, v19, 8, v16\nv_and_b32 v20, 15, v0\nv_lshl_add_u32 v16, v20, 4, v16")
    a("v_lshlrev_b32 v17, 6, v18\nv_lshl_add_u32 v17, v19, 3, v17")
    a("v_lshlrev_b32 v21, 7, v18\nv_bfe_u32 v19, v0, 3, 1\nv_lshl_add_u32 v21, v19, 6, v21\nv_and_b32 v19, 7, v0\nv_lshl_add_u32 v21, v19, 1, v21")
    spin(CA, val=8, sleep=2)
    stamp(5)
    OD, OM = 96, 112
    if ogate:
        a("s_mov_b32 s59, 0")
        a.label("L_ogate")
        a("s_load_dwordx16 s[4:19], s[62:63], 0 glc\ns_load_dwordx16 s[40:55], s[62:63], 64 glc\ns_waitcnt lgkmcnt(0)")
        a("s_xor_b32 s34, s4, s57")
        for r in list(range(6, 20, 2)) + list(range(40, 56, 2)):
            a("s_xor_b32 s35, s%d, s57\ns_or_b32 s34, s34, s35" % r)
        a("s_and_b32 s34, s34, 0xff\ns_cbranch_scc0 L_ogated\ns_add_u32 s59, s59, 1\ns_cmp_lt_u32 s59, 64\ns_cbranch_scc1 L_ogate")
        a.label("L_ogated")
        if stamps: a("s_mov_b32 s91, s59")
        stamp(8)
    poll([(OM + 4 * k, "global_load_dwordx2 %s, v17, s[62:63] offset:%d sc1" % (vr(OM + 4 * k, 2), 16 * k), 2) for k in range(4)] +
         [(OD + 4 * k, "global_load_dwordx4 %s, v16, s[60:61] offset:%d sc1" % (vr(OD + 4 * k, 4), 512 * k)) for k in range(4)], "v18", "O", poll_sleep)
    stamp(6)
    a("v_max3_f32 v24, v%d, v%d, v%d\nv_max_f32 v24, v24, v%d" % (OM, OM + 4, OM + 8, OM + 12))
    a("v_mov_b32 v25, v24\ns_nop 1\nv_permlane16_swap_b32 v24, v25\nv_max_f32 v24, v24, v25")
    for k in range(4): a("v_sub_f32 v%d, v%d, v24" % (OM + 4 * k, OM + 4 * k))
    for k in range(4): a("v_exp_f32 v%d, v%d" % (OM + 4 * k, OM + 4 * k))
    a("s_nop 0\nv_mul_f32 v28, v%d, v%d" % (OM, OM + 1))
    for k in range(1, 4): a("v_fmac_f32 v28, v%d, v%d" % (OM + 4 * k, OM + 4 * k + 1))
    for i in range(4): a("v_mul_f32 v%d, v%d, v%d" % (24 + i, OM, OD + i))
    for k in range(1, 4):
        for i in range(4): a("v_fmac_f32 v%d, v%d, v%d" % (24 + i, OM + 4 * k, OD + 4 * k + i))
    for i in (4, 0, 1, 2, 3): a("v_mov_b32 v%d, v%d" % (32 + i, 24 + i))
    for i in (4, 0, 1, 2, 3): a("v_permlane16_swap_b32 v%d, v%d" % (24 + i, 32 + i))
    a("v_add_f32 v28, v28, v36\nv_rcp_f32 v28, v28")
    for i in range(4): a("v_add_f32 v%d, v%d, v%d" % (24 + i, 24 + i, 32 + i))
    for i in range(4): a("v_mul_f32 v%d, v%d, v28" % (24 + i, 24 + i))
    a("v_cvt_pk_bf16_f32 v24, v24, v25\nv_cvt_pk_bf16_f32 v25, v26, v27\nv_mov_b32 v2, 1")
    a("ds_write_b16 v21, v24 offset:%d\nds_write_b16_d16_hi v21, v24 offset:%d\nds_write_b16 v21, v25 offset:%d\nds_write_b16_d16_hi v21, v25 offset:%d" % (AV, AV + 16, AV + 32, AV + 48))
    a("s_mov_b64 exec, 1\nds_add_u32 v1, v2 offset:%d\ns_mov_b64 exec, -1" % FA)
    stamp(7)
    a("s_branch L_fin")

    a.label("L_haux")
    a("s_setprio 3")
    a("s_movk_i32 s34, 9216\nv_mad_u32_u24 v19, v4, s34, v5\nv_mad_u32_u24 v20, v4, s34, v6\nv_lshlrev_b32 v16, 4, v0")
    a("s_and_b32 s34, s32, 1\ns_mul_i32 s36, s34, %d\ns_lshr_b32 s35, s32, 1\ns_lshl_b32 s35, s35, 7\ns_add_u32 s36, s36, s35" % (288 * 9216))
    a("s_mov_b32 m0, %d\ns_waitcnt lgkmcnt(0)\ns_load_dword s56, s[26:27], 0" % GW)
    srd(44, 20, 1152); srd(52, 16, 576 * 4608 * 2)
    spin(FS0, sleep=0)
    a("s_cmp_lt_u32 s30, 4\ns_cbranch_scc1 L_h_nf\ns_cmp_ge_u32 s30, 13\ns_cbranch_scc1 L_h_r")
    for k in range(2): a("buffer_load_dwordx4 v16, s[44:47], 0 offen offset:%d lds" % (k * 1024))
    a("s_mov_b32 m0, %d\ns_nop 0" % W1)
    for rg in range(36):
        if w1depth and rg >= w1depth: a("s_waitcnt vmcnt(%d)" % (w1depth - 1))
        a("buffer_load_dwordx4 %s, s[52:55], s36 offen%s lds" % ("v19" if rg % 2 == 0 else "v20", ntw))
        if rg < 35: a("s_add_u32 m0, m0, 1024\ns_add_u32 s36, s36, %d" % (8 * 9216))
    if fs1wait is not None: a("s_waitcnt vmcnt(%d)" % fs1wait)
    setflag(FS1)
    stamp(1)
    tag_setup()
    spin(FS0 + 16)
    a("s_and_b32 s35, s32, 1\ns_mul_i32 s35, s35, 576")
    gemv1(9, W1, "s35", 32, lambda tau: 36 - 4 * (tau + 1))
    stamp(2)
    a("s_bitcmp1_b32 s32, 0\ns_cselect_b64 s[62:63], -1, 0")
    a("s_xor_b32 s34, s32, 1\ns_lshl_b32 s34, s34, 8")
    wsbase(60, "s34", HIN)
    a("v_and_b32 v16, 15, v0\nv_lshlrev_b32 v16, 4, v16\ns_nop 1")
    for k, (lo, hi) in enumerate([(32, 40), (33, 41), (36, 44), (37, 45)]):
        a("v_cndmask_b32 v%d, v%d, v%d, s[62:63]\nv_cndmask_b32 v%d, v%d, v%d, s[62:63]" % (48 + k, lo, hi, 24 + k, hi, lo))
    for k in range(4): a("v_bfi_b32 v%d, s58, v%d, v11" % (24 + k, 24 + k))
    a("s_mov_b64 exec, 0xffff\nglobal_store_dwordx4 v16, v[24:27], s[60:61] sc1\ns_mov_b64 exec, -1")
    stamp(3)
    a("s_branch L_gate")
    a.label("L_h_r")
    setflag(FS1)
    a("s_branch L_fin")
    a.label("L_h_nf")
    setflag(FS1)
    for k in range(2): a("buffer_load_dwordx4 v16, s[44:47], 0 offen offset:%d lds" % (k * 1024))
    spin(FS0 + 16)
    a("s_waitcnt vmcnt(0)")
    a.label("L_gate")
    a("v_and_b32 v16, 31, v0\nv_lshlrev_b32 v16, 2, v16\nv_lshrrev_b32 v17, 5, v0\ns_movk_i32 s34, 1152\nv_mad_u32_u24 v17, v17, s34, v16")
    for k in range(9):
        a("ds_read_b32 v%d, v17 offset:%d" % (64 + k, XS + 128 * k))
        if k == 6: a("s_waitcnt lgkmcnt(4)")
    for k in range(9):
        a("ds_read_b32 v%d, v16 offset:%d" % (76 + k, GW + 128 * k))
        if k in (2, 6): a("s_waitcnt lgkmcnt(6)")
    a("s_mov_b32 s35, 0xffff0000\nv_mov_b32 v18, 0\ns_waitcnt lgkmcnt(0)")
    for k in range(9):
        x, w = 64 + k, 76 + k
        a("v_lshlrev_b32 v20, 16, v%d\nv_and_b32 v21, s35, v%d\nv_lshlrev_b32 v22, 16, v%d\nv_and_b32 v23, s35, v%d" % (x, x, w, w))
        a("v_mul_f32 v20, v20, v22\nv_mul_f32 v21, v21, v23\nv_cvt_pk_bf16_f32 v20, v20, v21\nv_lshlrev_b32 v21, 16, v20\nv_and_b32 v20, s35, v20\nv_add_f32 v18, v18, v21\nv_add_f32 v18, v18, v20")
    a("s_nop 1")
    for sh in (1, 2, 4, 8):
        a("v_add_f32_dpp v18, v18, v18 row_ror:%d row_mask:0xf bank_mask:0xf\ns_nop 1" % sh)
    a("v_mov_b32 v19, v18\ns_nop 1\nv_permlane16_swap_b32 v18, v19\nv_add_f32 v18, v18, v19")
    a("v_cvt_pk_bf16_f32 v18, v18, v18\nv_and_b32 v18, s35, v18\nv_mul_f32 v18, 0x%x, v18\nv_exp_f32 v18, v18\ns_nop 0\nv_add_f32 v18, 1.0, v18\nv_rcp_f32 v18, v18\ns_nop 0" % f32bits(-math.log2(math.e)))
    a("v_cvt_pk_bf16_f32 v18, v18, v18\nv_and_b32 v18, s35, v18\nv_sub_f32 v19, 1.0, v18\nv_cvt_pk_bf16_f32 v19, v19, v19\nv_and_b32 v19, s35, v19")
    a("v_lshrrev_b32 v17, 5, v0\nv_lshlrev_b32 v17, 2, v17\nv_mov_b32 v2, 1")
    a("s_cmp_lt_u32 s30, 4\ns_cbranch_scc0 L_h_f")
    a("ds_write_b32 v17, v18 offset:%d" % GS)
    a("s_mov_b64 exec, 1\nds_add_u32 v1, v2 offset:%d\ns_mov_b64 exec, -1" % FA)
    a("s_branch L_fin")
    a.label("L_h_f")
    a("ds_write_b32 v17, v19 offset:%d" % GS)
    a("s_lshl_b32 s34, s32, 8")
    wsbase(60, "s34", HIN)
    a("v_and_b32 v16, 15, v0\nv_lshlrev_b32 v17, 1, v16\nv_lshlrev_b32 v16, 4, v16")
    stamp(4)
    poll([(64, "global_load_dwordx4 v[64:67], v16, s[60:61] sc1")], "v18", "H", poll_sleep)
    for k in range(4): a("v_add_f32 v%d, v%d, v%d\nv_max_f32 v%d, 0, v%d" % (64 + k, 64 + k, 48 + k, 64 + k, 64 + k))
    a("v_cvt_pk_bf16_f32 v64, v64, v65\nv_cvt_pk_bf16_f32 v65, v66, v67\ns_mov_b64 exec, 0xffff")
    a("ds_write_b16 v17, v64 offset:%d\nds_write_b16_d16_hi v17, v64 offset:%d\nds_write_b16 v17, v65 offset:%d\nds_write_b16_d16_hi v17, v65 offset:%d" % (AV, AV + 128, AV + 32, AV + 160))
    a("v_mov_b32 v2, 2\ns_mov_b64 exec, 1\nds_write_b32 v1, v2 offset:%d\ns_mov_b64 exec, -1" % FA)
    stamp(5)

    a.label("L_fin")
    if stamps:
        stamp(NST - 1)
        a("s_mul_i32 s34, s2, %d\ns_add_u32 s34, s34, s3\ns_lshl_b32 s34, s34, 7" % NW)
        wsbase(60, "s34", 0x8000000)
        a("s_mov_b64 exec, 1")
        for k in range(NST):
            a("v_mov_b32 v12, s%d\nv_mov_b32 v13, s%d\nglobal_store_dwordx2 v1, v[12:13], s[60:61] offset:%d\ns_nop 1" % (64 + 2 * k, 65 + 2 * k, 8 * k))
        for k in range(4):
            a("v_mov_b32 v12, s%d\nv_mov_b32 v13, 0\nglobal_store_dwordx2 v1, v[12:13], s[60:61] offset:%d\ns_nop 1" % (90 + k, 8 * (NST + k)))
    a.label("L_end")
    a("s_endpgm")
    return wrap(a.text(), 256, NW * 64, LDS_TOTAL, 160)

if __name__ == "__main__":
    open("v3.s", "w").write(gen(kvdepth=3, ldepth=24, rsleep=1))
    open("v3s.s", "w").write(gen(stamps=True, kvdepth=3, ldepth=24, rsleep=1))
    open("v3s_b.s", "w").write(gen(stamps=True, kvdepth=4, ldepth=32, ldepthF=24, rsleep=1))
    open("v3s_c.s", "w").write(gen(stamps=True, kvdepth=3, ldepth=32, ldepthF=16, rsleep=8))
    open("v3_nont.s", "w").write(gen(nt="", kvdepth=3, ldepth=24, rsleep=1))
```

```python
import sys, math, struct
from asmlib import *

FQ, FA, FW, CA, CR, FS0, FS1, CI = 0, 4, 8, 64, 68, 72, 76, 80
QV, AV, GS, XS, GW = 256, 768, 1024, 2048, 5120
ACC, ML, WQ, W1, WBF, WBO, LDS_TOTAL = 8192, 16384, 20480, 40960, 77824, 40960, 114688
QIN, HIN, OIN, MLIN, RIN = 0x1000, 0x40000, 0x80000, 0xC8000, 0x100000
RSTRIDE = 208 * 128
CSC = math.log2(math.e) / math.sqrt(128.0)
def f32bits(x): return struct.unpack("<I", struct.pack("<f", x))[0]
NW = 11
NST = 12

def gen(nt=" nt", ntw=None, stamps=False, pf=True, poll_sleep=1, rsleep=2, ldepth=20, kvdepth=0, look=6, rot=True, w1depth=24, fs1wait=8, ogate=True, ldepthF=None, dbgmax=False):
    if ldepthF is None: ldepthF = ldepth
    if ntw is None: ntw = nt
    a = Asm()
    def stamp(k):
        if stamps:
            a("s_memrealtime s[%d:%d]\ns_waitcnt lgkmcnt(0)" % (64 + 2 * k, 65 + 2 * k))
    def srd(d, p, n):
        a("s_mov_b32 s%d, s%d\ns_mov_b32 s%d, s%d\ns_mov_b32 s%d, 0x%x\ns_mov_b32 s%d, 0x20000" % (d, p, d + 1, p + 1, d + 2, n, d + 3))
    def wsbase(d, s_off, const):
        a("s_add_u32 s%d, %s, 0x%x\ns_add_u32 s%d, s26, s%d\ns_addc_u32 s%d, s27, 0" % (d, s_off, const, d, d, d + 1))
    def spin(flag_off, vtmp="v2", vzero="v1", val=None, sleep=1):
        l = a.newlabel("L_spin"); d = a.newlabel("L_spun")
        a.label(l)
        a("ds_read_b32 %s, %s offset:%d\ns_waitcnt lgkmcnt(0)\nv_readfirstlane_b32 s34, %s" % (vtmp, vzero, flag_off, vtmp))
        a("s_cmp_lg_u32 s34, 0" if val is None else "s_cmp_eq_u32 s34, %d" % val)
        a("s_cbranch_scc1 %s\ns_sleep %d\ns_branch %s" % (d, sleep, l))
        a.label(d)
    def setflag(flag_off, vone="v2", vzero="v1"):
        a("v_mov_b32 %s, 1\nds_write_b32 %s, %s offset:%d" % (vone, vzero, vone, flag_off))
    def xor_reduce(op, regs, tmps):
        for sw in ("v_permlane16_swap_b32", "v_permlane32_swap_b32"):
            for r, t in zip(regs, tmps): a("v_mov_b32 %s, %s" % (t, r))
            pad = max(0, 2 - (len(regs) - 1))
            if pad: a("s_nop %d" % (pad - 1))
            for r, t in zip(regs, tmps): a("%s %s, %s" % (sw, r, t))
            for r, t in zip(regs, tmps): a("%s %s, %s, %s" % (op, r, r, t))
    def poll(loads, vacc, lbl, sleep):
        l = a.newlabel("L_poll" + lbl); d = a.newlabel("L_polled" + lbl)
        a("s_mov_b32 s59, 0")
        a.label(l)
        for ld_ in loads: a(ld_[1])
        a("s_waitcnt vmcnt(0)")
        regs = [ld_[0] + k for ld_ in loads for k in range(ld_[2] if len(ld_) > 2 else 4)]
        for r in regs: a("v_xor_b32 v%d, s57, v%d" % (r, r))
        a("v_or3_b32 %s, v%d, v%d, v%d" % (vacc, regs[0], regs[1], regs[2]))
        rest = regs[3:]
        while rest:
            if len(rest) >= 2:
                a("v_or3_b32 %s, %s, v%d, v%d" % (vacc, vacc, rest[0], rest[1])); rest = rest[2:]
            else:
                a("v_or_b32 %s, %s, v%d" % (vacc, vacc, rest[0])); rest = rest[1:]
        a("v_and_b32 %s, 0xff, %s\nv_cmp_ne_u32 vcc, 0, %s" % (vacc, vacc, vacc))
        a("s_cbranch_vccz %s" % d)
        a("s_add_u32 s59, s59, 1\ns_cmp_lt_u32 s59, 0x8000\ns_cbranch_scc0 %s" % d)
        if sleep: a("s_sleep %d" % sleep)
        a("s_branch %s" % l)
        a.label(d)
        if stamps: a("s_mov_b32 s%d, s59" % (90 + {"Q": 0, "H": 1, "O": 2, "R": 3}[lbl]))
    def tag_setup():
        a("s_waitcnt lgkmcnt(0)\ns_add_u32 s57, s56, 1\ns_and_b32 s57, s57, 0xff\nv_mov_b32 v11, s57")
    def gemv1(nsteps, wbase, s_k0bytes, acc, vm_after):
        a("s_movk_i32 s34, 1152\nv_mul_lo_u32 v16, v10, s34\nv_lshl_add_u32 v16, v3, 4, v16\nv_add_u32 v16, %s, v16" % s_k0bytes)
        for T in range(4): a("v_add_u32 v%d, %d, v%d" % (20 + T, wbase, 12 + T))
        units = [(tau, T) for tau in range(nsteps) for T in range(4)]
        AB = [24, 28, 100]
        NB = look + 1
        BB = [64 + 4 * k for k in range(NB)]
        q = []
        def issue(u):
            tau, T = units[u]
            if T == 0:
                w = vm_after(tau)
                if w is not None: a("s_waitcnt vmcnt(%d)" % w)
                a("ds_read_b128 %s, v16 offset:%d" % (vr(AB[tau % 3], 4), XS + tau * 64)); q.append(("A", tau))
            for eta in range(2):
                a("ds_read_b64_tr_b16 %s, v%d offset:%d" % (vr(BB[u % NB] + 2 * eta, 2), 20 + T, tau * 4096 + eta * 512)); q.append(("B", u))
            assert len(q) <= 15
        for u in range(min(look, len(units))): issue(u)
        for u in range(len(units)):
            tau, T = units[u]
            last = max(k for k, e in enumerate(q) if e == ("B", u))
            a("s_waitcnt lgkmcnt(%d)" % (len(q) - 1 - last))
            del q[:last + 1]
            a("v_mfma_f32_16x16x32_bf16 %s, %s, %s, %s" % (vr(acc + 4 * T, 4), vr(AB[tau % 3], 4), vr(BB[u % NB], 4), "0" if tau == 0 else vr(acc + 4 * T, 4)))
            if u + look < len(units): issue(u + look)

    if stamps:
        a("s_memrealtime s[64:65]")
        for k in range(1, NST): a("s_mov_b64 s[%d:%d], 0" % (64 + 2 * k, 65 + 2 * k))
        a("s_mov_b64 s[90:91], 0\ns_mov_b64 s[92:93], 0")
    a("s_cmp_ge_u32 s2, 256\ns_cbranch_scc1 L_end")
    a("s_load_dwordx16 s[4:19], s[0:1], 0\ns_load_dwordx8 s[20:27], s[0:1], 64")
    a("v_lshrrev_b32 v1, 6, v0\nv_and_b32 v0, 63, v0\ns_and_b32 s28, s2, 7\nv_readfirstlane_b32 s3, v1")
    a("s_lshl_b32 s28, s28, 5\ns_lshr_b32 s29, s2, 3\ns_add_u32 s28, s28, s29")
    a("s_lshr_b32 s29, s28, 4\ns_and_b32 s30, s28, 15")
    a("v_mov_b32 v1, 0\nv_lshrrev_b32 v3, 4, v0")
    a("s_cmp_lg_u32 s3, 0\ns_cbranch_scc1 L_noinit")
    a("v_lshlrev_b32 v2, 2, v0\nds_write_b32 v2, v1\ns_waitcnt lgkmcnt(0)")
    a.label("L_noinit")
    a("s_barrier")
    a("s_mov_b32 s58, 0xffffff00")
    a("s_lshl_b32 s32, s29, 2\ns_add_u32 s32, s32, s30\ns_mov_b32 s33, s32")
    a("s_cmp_lt_u32 s30, 4\ns_cbranch_scc1 L_roled")
    a("s_mul_i32 s32, s29, 9\ns_add_u32 s32, s32, s30\ns_sub_u32 s32, s32, 4\ns_add_u32 s33, s32, 64")
    a("s_cmp_lt_u32 s30, 13\ns_cbranch_scc1 L_roled")
    a("s_mul_i32 s32, s29, 3\ns_add_u32 s32, s32, s30\ns_sub_u32 s32, s32, 13")
    a.label("L_roled")
    a("v_lshrrev_b32 v4, 3, v0\nv_and_b32 v5, 7, v0\nv_and_b32 v6, 2, v4\nv_xor_b32 v5, v5, v6\nv_lshlrev_b32 v5, 4, v5\nv_xor_b32 v6, 64, v5")
    a("s_cmp_eq_u32 s3, 8\ns_cbranch_scc1 L_qaux")
    a.label("L_common2")
    a("v_bfe_u32 v7, v0, 2, 2\nv_lshl_add_u32 v8, v3, 3, v7\nv_lshlrev_b32 v8, 7, v8\nv_and_b32 v9, 3, v0\nv_lshl_add_u32 v8, v9, 3, v8")
    a("v_and_b32 v9, 1, v3\nv_lshlrev_b32 v9, 1, v9\nv_lshrrev_b32 v7, 1, v7\nv_or_b32 v9, v9, v7\nv_lshlrev_b32 v9, 5, v9")
    for T in range(4):
        a("v_xor_b32 v%d, %d, v9\nv_add_u32 v%d, v%d, v8" % (12 + T, T * 32, 12 + T, 12 + T))
    a("v_lshrrev_b32 v10, 2, v0\nv_xor_b32 v10, v10, v0\nv_and_b32 v10, 1, v10")
    a("s_cmp_eq_u32 s3, 8\ns_cbranch_scc1 L_qaux2")
    a("s_cmp_eq_u32 s3, 9\ns_cbranch_scc1 L_haux")
    a("s_cmp_eq_u32 s3, 10\ns_cbranch_scc1 L_loader")

    if pf:
        a("s_cmp_lg_u32 s3, 7\ns_cbranch_scc1 L_nopf")
        a("s_getpc_b64 s[60:61]")
        a.label("L_pfbase")
        a("v_lshlrev_b32 v2, 7, v0\nv_min_u32 v2, L_end-L_pfbase, v2\nglobal_load_dword v158, v2, s[60:61]\nv_add_u32 v2, 0x2000, v2\nv_min_u32 v2, L_end-L_pfbase, v2\nglobal_load_dword v159, v2, s[60:61]")
        a.label("L_nopf")
    a("v_bfe_u32 v16, v0, 2, 2\nv_lshlrev_b32 v16, 8, v16\nv_lshl_add_u32 v16, v3, 6, v16\nv_and_b32 v17, 3, v0\nv_lshl_add_u32 v16, v17, 4, v16")
    a("v_lshlrev_b32 v17, 4, v0")
    a("s_lshr_b32 s34, s30, 3\ns_lshl_b32 s34, s34, 4\ns_add_u32 s34, s34, s29\ns_lshl_b32 s34, s34, 13\ns_add_u32 s34, s34, 6144")
    a("s_and_b32 s35, s30, 7\ns_lshl_b32 s35, s35, 8\ns_add_u32 s34, s34, s35\ns_lshl_b32 s35, s3, 5\ns_add_u32 s34, s34, s35\ns_lshl_b32 s36, s34, 8")
    a("s_add_u32 s37, s28, s3")
    for t in range(8):
        a("s_add_u32 s34, s37, %d\ns_and_b32 s34, s34, 7\ns_lshl_b32 s34, s34, 10\ns_add_u32 s%d, s34, s36" % (t if rot else 0, 48 + t) if rot else "s_add_u32 s%d, s36, %d" % (48 + t, t * 1024))
    a("v_bfe_u32 v18, v0, 3, 1\nv_lshlrev_b32 v18, 8, v18\nv_lshl_add_u32 v18, v3, 6, v18\nv_and_b32 v19, 3, v0\nv_lshl_add_u32 v18, v19, 4, v18")
    a("v_and_b32 v19, 1, v0\nv_lshlrev_b32 v19, 4, v19\nv_mov_b32 v24, 0xffff\nv_lshlrev_b32 v24, v19, v24\nv_bfe_u32 v19, v0, 1, 2")
    for i in range(4):
        a("v_cmp_eq_u32 vcc, %d, v19\ns_nop 1\nv_cndmask_b32 v%d, 0, v24, vcc" % (i, 20 + i))
    a("s_mov_b32 s38, 0x%x" % f32bits(CSC))
    a("s_waitcnt lgkmcnt(0)")
    a("s_load_dword s56, s[26:27], 0")
    srd(40, 6, 64 << 20); srd(44, 8, 64 << 20)
    a("s_setprio 1")
    spin(FS1, sleep=0)
    stamp(1)
    KR, VR, DR = 64, 96, 128
    for t in range(16):
        if kvdepth and t >= kvdepth: a("s_waitcnt vmcnt(%d)" % (kvdepth - 1))
        if t < 8:
            a("buffer_load_dwordx4 %s, v16, s[40:43], s%d offen%s" % (vr(KR + 4 * t, 4), 48 + t, nt))
        else:
            a("buffer_load_dwordx4 %s, v17, s[44:47], s%d offen%s" % (vr(VR + 4 * (t - 8), 4), 48 + t - 8, nt))
    a("v_mov_b32 v2, 1\ns_mov_b64 exec, 1\nds_add_u32 v1, v2 offset:%d\ns_mov_b64 exec, -1" % CI)
    stamp(2)
    tag_setup()
    spin(FQ)
    stamp(3)
    a("ds_read_b128 v[24:27], v18 offset:%d\ns_waitcnt lgkmcnt(0)" % QV)
    for t in range(8):
        a("s_waitcnt vmcnt(%d)\nv_mfma_f32_16x16x32_bf16 %s, %s, v[24:27], 0" % (15 - t, vr(DR + 4 * t, 4), vr(KR + 4 * t, 4)))
    a("s_nop 7")
    S = 32
    for t in range(8): a("v_mov_b32_dpp v%d, v%d quad_perm:[0,0,0,0] row_mask:0xf bank_mask:0xf" % (S + t, DR + 4 * t))
    for i in range(1, 4):
        for t in range(8):
            a("v_add_f32_dpp v%d, v%d, v%d quad_perm:[%d,%d,%d,%d] row_mask:0xf bank_mask:0xf" % (S + t, DR + 4 * t + i, S + t, i, i, i, i))
    a("v_max3_f32 v28, v32, v33, v34\nv_max3_f32 v28, v28, v35, v36\nv_max3_f32 v28, v28, v37, v38\nv_max_f32 v28, v28, v39")
    xor_reduce("v_max_f32", ["v28"], ["v30"])
    a("v_mul_f32 v28, s38, v28")
    for t in range(8): a("v_fma_f32 v%d, v%d, s38, -v28" % (S + t, S + t))
    for t in range(8): a("v_exp_f32 v%d, v%d" % (S + t, S + t))
    a("s_nop 0")
    for t in range(8): a("v_cvt_pk_bf16_f32 v%d, v%d, v%d" % (40 + t, S + t, S + t))
    for t in range(8):
        for i in range(4): a("v_and_b32 v%d, v%d, v%d" % (DR + 4 * t + i, 40 + t, 20 + i))
    a("v_add_f32 v29, v32, v33\nv_add_f32 v30, v34, v35\nv_add_f32 v31, v36, v37\nv_add_f32 v32, v38, v39\nv_add_f32 v29, v29, v30\nv_add_f32 v31, v31, v32\nv_add_f32 v29, v29, v31")
    xor_reduce("v_add_f32", ["v29"], ["v30"])
    a("s_lshl_b32 s34, s3, 10\nv_lshl_add_u32 v30, v0, 4, s34\ns_lshl_b32 s34, s3, 9\nv_lshl_add_u32 v31, v0, 3, s34")
    a("ds_write_b64 v31, v[28:29] offset:%d" % ML)
    stamp(4)
    for t in range(8):
        a("s_waitcnt vmcnt(%d)\nv_mfma_f32_16x16x32_bf16 v[24:27], %s, %s, %s" % (7 - t, vr(VR + 4 * t, 4), vr(DR + 4 * t, 4), "0" if t == 0 else "v[24:27]"))
    a("v_mov_b32 v2, 1\ns_nop 6")
    a("ds_write_b128 v30, v[24:27] offset:%d" % ACC)
    a("s_mov_b64 exec, 1\nds_add_rtn_u32 v2, v1, v2 offset:%d\ns_mov_b64 exec, -1" % CA)
    a("v_lshlrev_b32 v30, 4, v0\nv_lshlrev_b32 v31, 3, v0")
    a("v_bfe_u32 v34, v0, 3, 1\nv_lshlrev_b32 v32, 13, v34\nv_lshrrev_b32 v35, 1, v3\nv_lshl_add_u32 v32, v35, 12, v32\nv_and_b32 v36, 1, v3\nv_lshl_add_u32 v32, v36, 7, v32\nv_and_b32 v36, 7, v0\nv_lshl_add_u32 v32, v36, 4, v32")
    a("v_lshlrev_b32 v33, 7, v34")
    a("s_waitcnt lgkmcnt(0)\nv_readfirstlane_b32 s34, v2")
    stamp(5)
    a("s_cmp_lg_u32 s34, 7\ns_cbranch_scc1 L_att_done")
    for w in range(8): a("ds_read_b64 %s, v31 offset:%d" % (vr(40 + 2 * w, 2), ML + w * 512))
    for w in range(7): a("ds_read_b128 %s, v30 offset:%d" % (vr(KR + 4 * w, 4), ACC + w * 1024))
    a("s_lshl_b32 s34, s29, 14\ns_lshl_b32 s35, s30, 8\ns_add_u32 s34, s34, s35")
    wsbase(60, "s34", OIN)
    a("s_lshl_b32 s34, s29, 8\ns_lshl_b32 s35, s30, 3\ns_add_u32 s34, s34, s35")
    wsbase(62, "s34", MLIN)
    a("s_waitcnt lgkmcnt(7)")
    a("ds_read_b128 %s, v30 offset:%d" % (vr(KR + 28, 4), ACC + 7 * 1024))
    a("v_max3_f32 v28, v40, v42, v44\nv_max3_f32 v28, v28, v46, v48\nv_max3_f32 v28, v28, v50, v52\nv_max_f32 v28, v28, v54\nv_and_b32 v28, s58, v28")
    for w in range(8): a("v_sub_f32 v%d, v%d, v28" % (40 + 2 * w, 40 + 2 * w))
    for w in range(8): a("v_exp_f32 v%d, v%d" % (40 + 2 * w, 40 + 2 * w))
    a("s_waitcnt lgkmcnt(0)")
    for i in range(4): a("v_mul_f32 v%d, v40, v%d" % (24 + i, KR + i))
    for w in range(1, 8):
        for i in range(4): a("v_fmac_f32 v%d, v%d, v%d" % (24 + i, 40 + 2 * w, KR + 4 * w + i))
    for i in range(4): a("v_bfi_b32 v%d, s58, v%d, v11" % (24 + i, 24 + i))
    a("global_store_dwordx4 v32, v[24:27], s[60:61] sc1")
    a("v_mul_f32 v29, v40, v41")
    for w in range(1, 8): a("v_fmac_f32 v29, v%d, v%d" % (40 + 2 * w, 41 + 2 * w))
    a("v_bfi_b32 v36, s58, v28, v11\nv_bfi_b32 v37, s58, v29, v11")
    a("s_mov_b64 exec, 0x101")
    a("global_store_dwordx2 v33, v[36:37], s[62:63] sc1")
    a("s_mov_b64 exec, -1")
    a.label("L_att_done")
    stamp(6)
    a("s_cmp_ge_u32 s30, 13\ns_cbranch_scc1 L_rpath")
    a("s_lshl_b32 s34, s3, 2\nv_mov_b32 v16, s34")
    spin(FW, vzero="v16")
    a("s_mov_b32 s39, s3")
    a.label("L_frag")
    stamp(7)
    BF = 64
    a("s_cmp_lt_u32 s30, 4\ns_cbranch_scc0 L_fragF")
    def frags(role):
        n = 8 if role == "O" else 4
        wb = WBO if role == "O" else WBF
        a("s_mul_i32 s34, s39, %d\ns_add_u32 s34, s34, %d" % (n * 1024, wb))
        for T in range(4): a("v_add_u32 v%d, s34, v%d" % (16 + T, 12 + T))
        cnt = 0
        for tau in range(n // 4):
            for T in range(4):
                for eta in range(2):
                    if cnt == 14: a("s_waitcnt lgkmcnt(6)"); cnt = 6
                    a("ds_read_b64_tr_b16 %s, v%d offset:%d" % (vr(BF + tau * 16 + T * 4 + eta * 2, 2), 16 + T, tau * 4096 + eta * 512)); cnt += 1
    frags("O")
    a("s_branch L_frag2")
    a.label("L_fragF")
    frags("F")
    a.label("L_frag2")
    a("v_bfe_u32 v20, v0, 3, 2\ns_mov_b32 s34, %d\nv_and_b32 v21, 7, v0\nv_lshlrev_b32 v21, 4, v21\nv_mad_u32_u24 v20, v20, s34, v21" % RSTRIDE)
    a("v_lshlrev_b32 v21, 7, v10\nv_lshl_add_u32 v21, v3, 4, v21\nv_and_b32 v22, 1, v3\nv_lshlrev_b32 v22, 2, v22")
    a("s_mul_i32 s34, s39, %d\ns_lshl_b32 s35, s33, 7\ns_add_u32 s34, s34, s35" % (4 * RSTRIDE))
    wsbase(60, "s34", RIN)
    spin(FA, val=2)
    stamp(8)
    a("ds_read_b128 v[24:27], v21 offset:%d\nds_read_b128 v[28:31], v21 offset:%d\nds_read_b32 v23, v22 offset:%d" % (AV, AV + 64, GS))
    a("s_waitcnt lgkmcnt(2)")
    for T in range(4): a("v_mfma_f32_16x16x32_bf16 %s, v[24:27], %s, 0" % (vr(32 + 4 * T, 4), vr(BF + 4 * T, 4)))
    a("s_cmp_lt_u32 s30, 4\ns_cbranch_scc0 L_gemv1")
    a("s_waitcnt lgkmcnt(1)")
    for T in range(4): a("v_mfma_f32_16x16x32_bf16 %s, v[28:31], %s, %s" % (vr(32 + 4 * T, 4), vr(BF + 16 + 4 * T, 4), vr(32 + 4 * T, 4)))
    a.label("L_gemv1")
    a("s_waitcnt lgkmcnt(0)\ns_nop 5")
    for T in range(4): a("v_mul_f32 v%d, v23, v%d" % (24 + T, 32 + 4 * T))
    for T in range(4): a("v_bfi_b32 v%d, s58, v%d, v11" % (24 + T, 24 + T))
    a("s_mov_b32 exec_hi, 0\nglobal_store_dwordx4 v20, v[24:27], s[60:61] sc1\ns_mov_b64 exec, -1")
    stamp(9)
    a("s_branch L_fin")

    a.label("L_loader")
    a("s_cmp_ge_u32 s30, 13\ns_cbranch_scc1 L_fin")
    a("s_movk_i32 s34, 1152\nv_mad_u32_u24 v16, v4, s34, v5\nv_mad_u32_u24 v17, v4, s34, v6\nv_mov_b32 v18, 1")
    a("s_waitcnt lgkmcnt(0)\ns_load_dword s56, s[26:27], 0")
    a("s_cmp_lt_u32 s30, 4\ns_cbranch_scc0 L_ldF")
    def wload(role):
        n = 8 if role == "O" else 4
        wb = WBO if role == "O" else WBF
        if role == "O": srd(48, 12, 4096 * 576 * 2)
        else: srd(48, 18, 4608 * 576 * 2)
        a("s_mul_i32 s36, s32, %d\ns_mov_b32 m0, %d" % (n * 8 * 1152, wb))
        tag_setup()
        spin(CI, val=8, sleep=2)
        stamp(1)
        tot = 9 * n
        flagged = 0
        ld = ldepth if role == "O" else ldepthF
        for k in range(tot):
            s_, rg = divmod(k, n)
            if k >= ld:
                a("s_waitcnt vmcnt(%d)" % (ld - 1))
                done = k - ld + 1
                while (flagged + 1) * n <= done:
                    a("ds_write_b32 v1, v18 offset:%d" % (FW + 4 * flagged)); flagged += 1
            a("buffer_load_dwordx4 %s, s[48:51], s36 offen%s lds" % ("v16" if rg % 2 == 0 else "v17", ntw))
            if k < tot - 1:
                a("s_add_u32 m0, m0, 1024")
                if rg < n - 1: a("s_add_u32 s36, s36, %d" % (8 * 1152))
                else: a("s_sub_u32 s36, s36, %d" % ((n - 1) * 8 * 1152 - 128))
        stamp(2)
        while flagged < 8:
            a("s_waitcnt vmcnt(%d)\nds_write_b32 v1, v18 offset:%d" % (tot - (flagged + 1) * n, FW + 4 * flagged)); flagged += 1
        a("s_mov_b32 s39, 8\ns_waitcnt vmcnt(0)")
        a("s_branch L_frag")
    wload("O")
    a.label("L_ldF")
    wload("F")

    a.label("L_rpath")
    a("s_cmp_ge_u32 s32, 36\ns_cbranch_scc1 L_fin")
    a("s_mul_i32 s34, s32, %d\ns_mul_i32 s35, s3, 3072\ns_add_u32 s34, s34, s35" % RSTRIDE)
    wsbase(60, "s34", RIN)
    a("v_lshlrev_b32 v16, 4, v0\ns_cmp_eq_u32 s3, 8\ns_cselect_b32 s35, 1, 2\ns_cselect_b32 s36, 0, 1.0\ns_lshl_b32 s35, s35, 10\nv_add_u32 v17, s35, v16")
    poll([(32, "global_load_dwordx4 v[32:35], v16, s[60:61] sc1"),
          (36, "global_load_dwordx4 v[36:39], v16, s[60:61] offset:1024 sc1"),
          (40, "global_load_dwordx4 v[40:43], v17, s[60:61] sc1")], "v18", "R", rsleep)
    stamp(8)
    for i in range(4): a("v_add_f32 v%d, v%d, v%d" % (32 + i, 32 + i, 36 + i))
    for i in range(4): a("v_fma_f32 v%d, v%d, s36, v%d" % (32 + i, 40 + i, 32 + i))
    a("s_nop 0")
    for i in range(4): a("v_add_f32_dpp v%d, v%d, v%d row_ror:8 row_mask:0xf bank_mask:0xf" % (32 + i, 32 + i, 32 + i))
    xor_reduce("v_add_f32", ["v32", "v33", "v34", "v35"], ["v36", "v37", "v38", "v39"])
    a("v_and_b32 v16, 7, v0\nv_lshlrev_b32 v16, 4, v16\ns_lshl_b32 s34, s3, 7\nv_add_u32 v17, s34, v16\nv_mov_b32 v2, 1")
    a("ds_write_b128 v17, v[32:35] offset:%d" % WQ)
    a("s_mov_b64 exec, 1\nds_add_rtn_u32 v2, v1, v2 offset:%d\ns_mov_b64 exec, -1" % CR)
    a("s_lshr_b32 s34, s32, 2\ns_lshl_b32 s34, s34, 7\ns_bfe_u32 s35, s32, 0x10001\ns_mul_i32 s35, s35, 1152\ns_add_u32 s34, s34, s35\ns_and_b32 s35, s32, 1\ns_lshl_b32 s35, s35, 4\ns_add_u32 s34, s34, s35")
    a("v_lshrrev_b32 v17, 3, v16\nv_add_u32 v17, s34, v17")
    a("s_waitcnt lgkmcnt(0)\nv_readfirstlane_b32 s34, v2")
    a("s_cmp_lg_u32 s34, 8\ns_cbranch_scc1 L_fin")
    for w in range(9): a("ds_read_b128 %s, v16 offset:%d" % (vr(64 + 4 * w, 4), WQ + w * 128))
    for w in range(1, 9):
        a("s_waitcnt lgkmcnt(%d)" % (8 - w))
        a("v_pk_add_f32 v[64:65], v[64:65], %s\nv_pk_add_f32 v[66:67], v[66:67], %s" % (vr(64 + 4 * w, 2), vr(66 + 4 * w, 2)))
    a("v_cvt_pk_bf16_f32 v32, v64, v65\nv_cvt_pk_bf16_f32 v33, v66, v67")
    a("s_mov_b64 exec, 0xff")
    a("global_store_short v17, v32, s[22:23]\nglobal_store_short_d16_hi v17, v32, s[22:23] offset:32\nglobal_store_short v17, v33, s[22:23] offset:64\nglobal_store_short_d16_hi v17, v33, s[22:23] offset:96")
    a("s_cmp_lg_u32 s32, 0\ns_cbranch_scc1 L_rdone")
    a("s_add_u32 s34, s56, 1\nv_mov_b32 v2, s34\ns_mov_b64 exec, 1\nglobal_store_dword v1, v2, s[26:27]")
    a.label("L_rdone")
    a("s_mov_b64 exec, -1")
    stamp(9)
    a("s_branch L_fin")

    a.label("L_qaux")
    a("s_setprio 3")
    a("v_lshl_add_u32 v17, v4, 13, v5\nv_lshl_add_u32 v18, v4, 13, v6\nv_lshlrev_b32 v16, 4, v0")
    a("s_and_b32 s34, s28, 3\ns_mul_i32 s36, s34, %d\ns_lshr_b32 s35, s28, 2\ns_lshl_b32 s35, s35, 7\ns_add_u32 s36, s36, s35" % (144 * 8192))
    a("s_mov_b32 m0, %d\ns_waitcnt lgkmcnt(0)" % XS)
    srd(40, 4, 2304)
    for k in range(3): a("buffer_load_dwordx4 v16, s[40:43], 0 offen offset:%d lds" % (k * 1024))
    srd(48, 10, 576 * 4096 * 2)
    a("s_mov_b32 m0, %d\ns_load_dword s56, s[26:27], 0" % WQ)
    for rg in range(18):
        a("buffer_load_dwordx4 %s, s[48:51], s36 offen%s lds" % ("v17" if rg % 2 == 0 else "v18", ntw))
        if rg < 17: a("s_add_u32 m0, m0, 1024\ns_add_u32 s36, s36, %d" % (8 * 8192))
    setflag(FS0)
    a("v_mov_b32 v20, 0\nv_mov_b32 v21, 0\nv_mov_b32 v22, 0\nv_mov_b32 v23, 0")
    a("ds_write_b128 v16, v[20:23] offset:%d\nds_write_b128 v16, v[20:23] offset:%d" % (WQ + 144 * 128, WQ + 152 * 128))
    a("s_branch L_common2")
    a.label("L_qaux2")
    stamp(1)
    tag_setup()
    a("v_and_b32 v16, 15, v0\nv_lshlrev_b32 v16, 4, v16\nv_lshl_add_u32 v17, v3, 12, v16")
    a("s_lshl_b32 s34, s29, 13\ns_and_b32 s35, s28, 3\ns_lshl_b32 s35, s35, 10\ns_add_u32 s34, s34, s35\ns_bfe_u32 s35, s28, 0x20002\ns_lshl_b32 s35, s35, 8\ns_add_u32 s34, s34, s35")
    wsbase(60, "s34", QIN)
    a("s_lshl_b32 s34, s29, 13\ns_lshr_b32 s35, s30, 3\ns_lshl_b32 s35, s35, 12\ns_add_u32 s34, s34, s35")
    wsbase(62, "s34", QIN)
    a("s_and_b32 s35, s28, 3\ns_mul_i32 s35, s35, 288")
    gemv1(5, WQ, "s35", 32, lambda tau: max(0, 18 - 4 * (tau + 1)))
    setflag(FS0 + 16)
    stamp(2)
    a("s_nop 3")
    for T in range(4): a("v_bfi_b32 v%d, s58, v%d, v11" % (24 + T, 32 + 4 * T))
    a("s_mov_b32 exec_hi, 0\nglobal_store_dwordx4 v17, v[24:27], s[60:61] sc1\ns_mov_b64 exec, -1")
    stamp(3)
    a("v_lshlrev_b32 v16, 4, v0")
    a("v_and_b32 v17, 15, v0\nv_lshlrev_b32 v17, 1, v17\nv_lshl_add_u32 v17, v3, 7, v17")
    poll([(64 + 4 * k, "global_load_dwordx4 %s, v16, s[62:63] offset:%d sc1" % (vr(64 + 4 * k, 4), 1024 * k)) for k in range(4)], "v18", "Q", poll_sleep)
    for i in range(4): a("v_add_f32 v%d, v%d, v%d\nv_add_f32 v%d, v%d, v%d" % (64 + i, 64 + i, 68 + i, 72 + i, 72 + i, 76 + i))
    for i in range(4): a("v_add_f32 v%d, v%d, v%d" % (64 + i, 64 + i, 72 + i))
    a("v_cvt_pk_bf16_f32 v64, v64, v65\nv_cvt_pk_bf16_f32 v65, v66, v67")
    a("ds_write_b16 v17, v64 offset:%d\nds_write_b16_d16_hi v17, v64 offset:%d\nds_write_b16 v17, v65 offset:%d\nds_write_b16_d16_hi v17, v65 offset:%d" % (QV, QV + 32, QV + 64, QV + 96))
    setflag(FQ)
    stamp(4)
    a("s_cmp_ge_u32 s30, 13\ns_cbranch_scc1 L_rpath")
    a("s_cmp_lt_u32 s30, 4\ns_cbranch_scc0 L_fin")
    a("s_lshl_b32 s34, s32, 12")
    wsbase(60, "s34", OIN)
    a("s_lshr_b32 s34, s32, 1\ns_lshl_b32 s34, s34, 7")
    wsbase(62, "s34", MLIN)
    a("v_lshrrev_b32 v18, 5, v0\nv_and_b32 v19, 1, v3\nv_lshlrev_b32 v16, 11, v18\nv_lshl_add_u32 v16, v19, 8, v16\nv_and_b32 v20, 15, v0\nv_lshl_add_u32 v16, v20, 4, v16")
    a("v_lshlrev_b32 v17, 6, v18\nv_lshl_add_u32 v17, v19, 3, v17")
    a("v_lshlrev_b32 v21, 7, v18\nv_bfe_u32 v19, v0, 3, 1\nv_lshl_add_u32 v21, v19, 6, v21\nv_and_b32 v19, 7, v0\nv_lshl_add_u32 v21, v19, 1, v21")
    spin(CA, val=8, sleep=2)
    stamp(5)
    OD, OM = 96, 112
    if ogate:
        a("s_mov_b32 s59, 0")
        a.label("L_ogate")
        a("s_load_dwordx16 s[4:19], s[62:63], 0 glc\ns_load_dwordx16 s[40:55], s[62:63], 64 glc\ns_waitcnt lgkmcnt(0)")
        a("s_xor_b32 s34, s4, s57")
        for r in list(range(6, 20, 2)) + list(range(40, 56, 2)):
            a("s_xor_b32 s35, s%d, s57\ns_or_b32 s34, s34, s35" % r)
        a("s_and_b32 s34, s34, 0xff\ns_cbranch_scc0 L_ogated\ns_add_u32 s59, s59, 1\ns_cmp_lt_u32 s59, 64\ns_cbranch_scc1 L_ogate")
        a.label("L_ogated")
        if stamps: a("s_mov_b32 s91, s59")
        stamp(8)
    poll([(OM + 4 * k, "global_load_dwordx2 %s, v17, s[62:63] offset:%d sc1" % (vr(OM + 4 * k, 2), 16 * k), 2) for k in range(4)] +
         [(OD + 4 * k, "global_load_dwordx4 %s, v16, s[60:61] offset:%d sc1" % (vr(OD + 4 * k, 4), 512 * k)) for k in range(4)], "v18", "O", poll_sleep)
    stamp(6)
    a("v_max3_f32 v24, v%d, v%d, v%d\nv_max_f32 v24, v24, v%d" % (OM, OM + 4, OM + 8, OM + 12))
    a("v_mov_b32 v25, v24\ns_nop 1\nv_permlane16_swap_b32 v24, v25\nv_max_f32 v24, v24, v25")
    for k in range(4): a("v_sub_f32 v%d, v%d, v24" % (OM + 4 * k, OM + 4 * k))
    for k in range(4): a("v_exp_f32 v%d, v%d" % (OM + 4 * k, OM + 4 * k))
    a("s_nop 0\nv_mul_f32 v28, v%d, v%d" % (OM, OM + 1))
    for k in range(1, 4): a("v_fmac_f32 v28, v%d, v%d" % (OM + 4 * k, OM + 4 * k + 1))
    for i in range(4): a("v_mul_f32 v%d, v%d, v%d" % (24 + i, OM, OD + i))
    for k in range(1, 4):
        for i in range(4): a("v_fmac_f32 v%d, v%d, v%d" % (24 + i, OM + 4 * k, OD + 4 * k + i))
    for i in (4, 0, 1, 2, 3): a("v_mov_b32 v%d, v%d" % (32 + i, 24 + i))
    for i in (4, 0, 1, 2, 3): a("v_permlane16_swap_b32 v%d, v%d" % (24 + i, 32 + i))
    a("v_add_f32 v28, v28, v36\nv_rcp_f32 v28, v28")
    for i in range(4): a("v_add_f32 v%d, v%d, v%d" % (24 + i, 24 + i, 32 + i))
    for i in range(4): a("v_mul_f32 v%d, v%d, v28" % (24 + i, 24 + i))
    a("v_cvt_pk_bf16_f32 v24, v24, v25\nv_cvt_pk_bf16_f32 v25, v26, v27\nv_mov_b32 v2, 1")
    a("ds_write_b16 v21, v24 offset:%d\nds_write_b16_d16_hi v21, v24 offset:%d\nds_write_b16 v21, v25 offset:%d\nds_write_b16_d16_hi v21, v25 offset:%d" % (AV, AV + 16, AV + 32, AV + 48))
    a("s_mov_b64 exec, 1\nds_add_u32 v1, v2 offset:%d\ns_mov_b64 exec, -1" % FA)
    stamp(7)
    a("s_branch L_fin")

    a.label("L_haux")
    a("s_setprio 3")
    a("s_movk_i32 s34, 9216\nv_mad_u32_u24 v19, v4, s34, v5\nv_mad_u32_u24 v20, v4, s34, v6\nv_lshlrev_b32 v16, 4, v0")
    a("s_and_b32 s34, s32, 1\ns_mul_i32 s36, s34, %d\ns_lshr_b32 s35, s32, 1\ns_lshl_b32 s35, s35, 7\ns_add_u32 s36, s36, s35" % (288 * 9216))
    a("s_mov_b32 m0, %d\ns_waitcnt lgkmcnt(0)\ns_load_dword s56, s[26:27], 0" % GW)
    srd(44, 20, 1152); srd(52, 16, 576 * 4608 * 2)
    spin(FS0, sleep=0)
    a("s_cmp_lt_u32 s30, 4\ns_cbranch_scc1 L_h_nf\ns_cmp_ge_u32 s30, 13\ns_cbranch_scc1 L_h_r")
    for k in range(2): a("buffer_load_dwordx4 v16, s[44:47], 0 offen offset:%d lds" % (k * 1024))
    a("s_mov_b32 m0, %d\ns_nop 0" % W1)
    for rg in range(36):
        if w1depth and rg >= w1depth: a("s_waitcnt vmcnt(%d)" % (w1depth - 1))
        a("buffer_load_dwordx4 %s, s[52:55], s36 offen%s lds" % ("v19" if rg % 2 == 0 else "v20", ntw))
        if rg < 35: a("s_add_u32 m0, m0, 1024\ns_add_u32 s36, s36, %d" % (8 * 9216))
    if fs1wait is not None: a("s_waitcnt vmcnt(%d)" % fs1wait)
    setflag(FS1)
    stamp(1)
    tag_setup()
    spin(FS0 + 16)
    a("s_and_b32 s35, s32, 1\ns_mul_i32 s35, s35, 576")
    gemv1(9, W1, "s35", 32, lambda tau: 36 - 4 * (tau + 1))
    stamp(2)
    a("s_bitcmp1_b32 s32, 0\ns_cselect_b64 s[62:63], -1, 0")
    a("s_xor_b32 s34, s32, 1\ns_lshl_b32 s34, s34, 8")
    wsbase(60, "s34", HIN)
    a("v_and_b32 v16, 15, v0\nv_lshlrev_b32 v16, 4, v16\ns_nop 1")
    for k, (lo, hi) in enumerate([(32, 40), (33, 41), (36, 44), (37, 45)]):
        a("v_cndmask_b32 v%d, v%d, v%d, s[62:63]\nv_cndmask_b32 v%d, v%d, v%d, s[62:63]" % (48 + k, lo, hi, 24 + k, hi, lo))
    for k in range(4): a("v_bfi_b32 v%d, s58, v%d, v11" % (24 + k, 24 + k))
    a("s_mov_b64 exec, 0xffff\nglobal_store_dwordx4 v16, v[24:27], s[60:61] sc1\ns_mov_b64 exec, -1")
    stamp(3)
    a("s_branch L_gate")
    a.label("L_h_r")
    setflag(FS1)
    a("s_branch L_fin")
    a.label("L_h_nf")
    setflag(FS1)
    for k in range(2): a("buffer_load_dwordx4 v16, s[44:47], 0 offen offset:%d lds" % (k * 1024))
    spin(FS0 + 16)
    a("s_waitcnt vmcnt(0)")
    a.label("L_gate")
    a("v_and_b32 v16, 31, v0\nv_lshlrev_b32 v16, 2, v16\nv_lshrrev_b32 v17, 5, v0\ns_movk_i32 s34, 1152\nv_mad_u32_u24 v17, v17, s34, v16")
    for k in range(9):
        a("ds_read_b32 v%d, v17 offset:%d" % (64 + k, XS + 128 * k))
        if k == 6: a("s_waitcnt lgkmcnt(4)")
    for k in range(9):
        a("ds_read_b32 v%d, v16 offset:%d" % (76 + k, GW + 128 * k))
        if k in (2, 6): a("s_waitcnt lgkmcnt(6)")
    a("s_mov_b32 s35, 0xffff0000\nv_mov_b32 v18, 0\ns_waitcnt lgkmcnt(0)")
    for k in range(9):
        x, w = 64 + k, 76 + k
        a("v_lshlrev_b32 v20, 16, v%d\nv_and_b32 v21, s35, v%d\nv_lshlrev_b32 v22, 16, v%d\nv_and_b32 v23, s35, v%d" % (x, x, w, w))
        a("v_mul_f32 v20, v20, v22\nv_mul_f32 v21, v21, v23\nv_cvt_pk_bf16_f32 v20, v20, v21\nv_lshlrev_b32 v21, 16, v20\nv_and_b32 v20, s35, v20\nv_add_f32 v18, v18, v21\nv_add_f32 v18, v18, v20")
    a("s_nop 1")
    for sh in (1, 2, 4, 8):
        a("v_add_f32_dpp v18, v18, v18 row_ror:%d row_mask:0xf bank_mask:0xf\ns_nop 1" % sh)
    a("v_mov_b32 v19, v18\ns_nop 1\nv_permlane16_swap_b32 v18, v19\nv_add_f32 v18, v18, v19")
    a("v_cvt_pk_bf16_f32 v18, v18, v18\nv_and_b32 v18, s35, v18\nv_mul_f32 v18, 0x%x, v18\nv_exp_f32 v18, v18\ns_nop 0\nv_add_f32 v18, 1.0, v18\nv_rcp_f32 v18, v18\ns_nop 0" % f32bits(-math.log2(math.e)))
    a("v_cvt_pk_bf16_f32 v18, v18, v18\nv_and_b32 v18, s35, v18\nv_sub_f32 v19, 1.0, v18\nv_cvt_pk_bf16_f32 v19, v19, v19\nv_and_b32 v19, s35, v19")
    a("v_lshrrev_b32 v17, 5, v0\nv_lshlrev_b32 v17, 2, v17\nv_mov_b32 v2, 1")
    a("s_cmp_lt_u32 s30, 4\ns_cbranch_scc0 L_h_f")
    a("ds_write_b32 v17, v18 offset:%d" % GS)
    a("s_mov_b64 exec, 1\nds_add_u32 v1, v2 offset:%d\ns_mov_b64 exec, -1" % FA)
    a("s_branch L_fin")
    a.label("L_h_f")
    a("ds_write_b32 v17, v19 offset:%d" % GS)
    a("s_lshl_b32 s34, s32, 8")
    wsbase(60, "s34", HIN)
    a("v_and_b32 v16, 15, v0\nv_lshlrev_b32 v17, 1, v16\nv_lshlrev_b32 v16, 4, v16")
    stamp(4)
    poll([(64, "global_load_dwordx4 v[64:67], v16, s[60:61] sc1")], "v18", "H", poll_sleep)
    for k in range(4): a("v_add_f32 v%d, v%d, v%d\nv_max_f32 v%d, 0, v%d" % (64 + k, 64 + k, 48 + k, 64 + k, 64 + k))
    a("v_cvt_pk_bf16_f32 v64, v64, v65\nv_cvt_pk_bf16_f32 v65, v66, v67\ns_mov_b64 exec, 0xffff")
    a("ds_write_b16 v17, v64 offset:%d\nds_write_b16_d16_hi v17, v64 offset:%d\nds_write_b16 v17, v65 offset:%d\nds_write_b16_d16_hi v17, v65 offset:%d" % (AV, AV + 128, AV + 32, AV + 160))
    a("v_mov_b32 v2, 2\ns_mov_b64 exec, 1\nds_write_b32 v1, v2 offset:%d\ns_mov_b64 exec, -1" % FA)
    stamp(5)

    a.label("L_fin")
    if dbgmax:
        stamp(NST - 1)
        a("s_mov_b64 exec, 1")
        def amax(slot, sreg, inv=False):
            a(("s_not_b32 s34, %s" if inv else "s_mov_b32 s34, %s") % sreg)
            a("v_mov_b32 v12, s34\nglobal_atomic_umax v1, v12, s[24:25] offset:%d\ns_nop 1" % (4 * slot))
        amax(0, "s64", True); amax(1, "s64"); amax(15, "s%d" % (64 + 2 * (NST - 1)))
        a("s_cmp_ge_u32 s3, 8\ns_cbranch_scc1 L_dbg_aux")
        for slot, k in ((2, 1), (3, 2), (4, 3), (5, 6), (6, 8), (7, 9)): amax(slot, "s%d" % (64 + 2 * k))
        a("s_branch L_end")
        a.label("L_dbg_aux")
        a("s_cmp_lg_u32 s3, 8\ns_cbranch_scc1 L_dbg_aux2")
        for slot, k in ((8, 1), (9, 2), (10, 3), (11, 4), (12, 6)): amax(slot, "s%d" % (64 + 2 * k))
        a("s_branch L_end")
        a.label("L_dbg_aux2")
        a("s_cmp_lg_u32 s3, 10\ns_cbranch_scc1 L_end")
        for slot, k in ((13, 1), (14, 7)): amax(slot, "s%d" % (64 + 2 * k))
    elif stamps:
        stamp(NST - 1)
        a("s_mul_i32 s34, s2, %d\ns_add_u32 s34, s34, s3\ns_lshl_b32 s34, s34, 7" % NW)
        wsbase(60, "s34", 0x8000000)
        a("s_mov_b64 exec, 1")
        for k in range(NST):
            a("v_mov_b32 v12, s%d\nv_mov_b32 v13, s%d\nglobal_store_dwordx2 v1, v[12:13], s[60:61] offset:%d\ns_nop 1" % (64 + 2 * k, 65 + 2 * k, 8 * k))
        for k in range(4):
            a("v_mov_b32 v12, s%d\nv_mov_b32 v13, 0\nglobal_store_dwordx2 v1, v[12:13], s[60:61] offset:%d\ns_nop 1" % (90 + k, 8 * (NST + k)))
    a.label("L_end")
    a("s_endpgm")
    return wrap(a.text(), 256, NW * 64, LDS_TOTAL, 160)

if __name__ == "__main__":
    open("v3.s", "w").write(gen(kvdepth=3, ldepth=24, rsleep=1))
    open("v3s.s", "w").write(gen(stamps=True, kvdepth=3, ldepth=24, rsleep=1))
    open("v3s_b.s", "w").write(gen(stamps=True, kvdepth=4, ldepth=32, ldepthF=24, rsleep=1))
    open("v3s_c.s", "w").write(gen(stamps=True, kvdepth=3, ldepth=32, ldepthF=16, rsleep=8))
    open("v3_dbg.s", "w").write(gen(stamps=True, dbgmax=True, kvdepth=3, ldepth=24, rsleep=1))
    open("v3_dbg_nont.s", "w").write(gen(nt="", stamps=True, dbgmax=True, kvdepth=3, ldepth=24, rsleep=1))
    open("v3_nont.s", "w").write(gen(nt="", kvdepth=3, ldepth=24, rsleep=1))
```

```python
import sys, math, struct
from asmlib import *

FQ, FA, FW, CA, CR, FS0, FS1, CI = 0, 4, 8, 64, 68, 72, 76, 80
QV, AV, GS, XS, GW = 256, 768, 1024, 2048, 5120
ACC, ML, WQ, W1, WBF, WBO, LDS_TOTAL = 8192, 16384, 20480, 40960, 77824, 40960, 114688
QIN, HIN, OIN, MLIN, RIN = 0x1000, 0x40000, 0x80000, 0xC8000, 0x100000
RSTRIDE = 208 * 128
CSC = math.log2(math.e) / math.sqrt(128.0)
def f32bits(x): return struct.unpack("<I", struct.pack("<f", x))[0]
NW = 11
NST = 12

def gen(nt=" nt", ntw=None, stamps=False, pf=True, poll_sleep=1, rsleep=2, ldepth=20, kvdepth=0, look=6, rot=True, w1depth=24, fs1wait=8, ogate=True, ldepthF=None, dbgmax=False):
    if ldepthF is None: ldepthF = ldepth
    if ntw is None: ntw = nt
    a = Asm()
    def stamp(k):
        if stamps:
            a("s_memrealtime s[%d:%d]\ns_waitcnt lgkmcnt(0)" % (64 + 2 * k, 65 + 2 * k))
    def srd(d, p, n):
        a("s_mov_b32 s%d, s%d\ns_mov_b32 s%d, s%d\ns_mov_b32 s%d, 0x%x\ns_mov_b32 s%d, 0x20000" % (d, p, d + 1, p + 1, d + 2, n, d + 3))
    def wsbase(d, s_off, const):
        a("s_add_u32 s%d, %s, 0x%x\ns_add_u32 s%d, s26, s%d\ns_addc_u32 s%d, s27, 0" % (d, s_off, const, d, d, d + 1))
    def spin(flag_off, vtmp="v2", vzero="v1", val=None, sleep=1):
        l = a.newlabel("L_spin"); d = a.newlabel("L_spun")
        a.label(l)
        a("ds_read_b32 %s, %s offset:%d\ns_waitcnt lgkmcnt(0)\nv_readfirstlane_b32 s34, %s" % (vtmp, vzero, flag_off, vtmp))
        a("s_cmp_lg_u32 s34, 0" if val is None else "s_cmp_eq_u32 s34, %d" % val)
        a("s_cbranch_scc1 %s\ns_sleep %d\ns_branch %s" % (d, sleep, l))
        a.label(d)
    def setflag(flag_off, vone="v2", vzero="v1"):
        a("v_mov_b32 %s, 1\nds_write_b32 %s, %s offset:%d" % (vone, vzero, vone, flag_off))
    def xor_reduce(op, regs, tmps):
        for sw in ("v_permlane16_swap_b32", "v_permlane32_swap_b32"):
            for r, t in zip(regs, tmps): a("v_mov_b32 %s, %s" % (t, r))
            pad = max(0, 2 - (len(regs) - 1))
            if pad: a("s_nop %d" % (pad - 1))
            for r, t in zip(regs, tmps): a("%s %s, %s" % (sw, r, t))
            for r, t in zip(regs, tmps): a("%s %s, %s, %s" % (op, r, r, t))
    def poll(loads, vacc, lbl, sleep):
        l = a.newlabel("L_poll" + lbl); d = a.newlabel("L_polled" + lbl)
        a("s_mov_b32 s59, 0")
        a.label(l)
        for ld_ in loads: a(ld_[1])
        a("s_waitcnt vmcnt(0)")
        regs = [ld_[0] + k for ld_ in loads for k in range(ld_[2] if len(ld_) > 2 else 4)]
        for r in regs: a("v_xor_b32 v%d, s57, v%d" % (r, r))
        a("v_or3_b32 %s, v%d, v%d, v%d" % (vacc, regs[0], regs[1], regs[2]))
        rest = regs[3:]
        while rest:
            if len(rest) >= 2:
                a("v_or3_b32 %s, %s, v%d, v%d" % (vacc, vacc, rest[0], rest[1])); rest = rest[2:]
            else:
                a("v_or_b32 %s, %s, v%d" % (vacc, vacc, rest[0])); rest = rest[1:]
        a("v_and_b32 %s, 0xff, %s\nv_cmp_ne_u32 vcc, 0, %s" % (vacc, vacc, vacc))
        a("s_cbranch_vccz %s" % d)
        a("s_add_u32 s59, s59, 1\ns_cmp_lt_u32 s59, 0x8000\ns_cbranch_scc0 %s" % d)
        if sleep: a("s_sleep %d" % sleep)
        a("s_branch %s" % l)
        a.label(d)
        if stamps: a("s_mov_b32 s%d, s59" % (90 + {"Q": 0, "H": 1, "O": 2, "R": 3}[lbl]))
    def tag_setup():
        a("s_waitcnt lgkmcnt(0)\ns_add_u32 s57, s56, 1\ns_and_b32 s57, s57, 0xff\nv_mov_b32 v11, s57")
    def gemv1(nsteps, wbase, s_k0bytes, acc, vm_after):
        a("s_movk_i32 s34, 1152\nv_mul_lo_u32 v16, v10, s34\nv_lshl_add_u32 v16, v3, 4, v16\nv_add_u32 v16, %s, v16" % s_k0bytes)
        for T in range(4): a("v_add_u32 v%d, %d, v%d" % (20 + T, wbase, 12 + T))
        units = [(tau, T) for tau in range(nsteps) for T in range(4)]
        AB = [24, 28, 100]
        NB = look + 1
        BB = [64 + 4 * k for k in range(NB)]
        q = []
        def issue(u):
            tau, T = units[u]
            if T == 0:
                w = vm_after(tau)
                if w is not None: a("s_waitcnt vmcnt(%d)" % w)
                a("ds_read_b128 %s, v16 offset:%d" % (vr(AB[tau % 3], 4), XS + tau * 64)); q.append(("A", tau))
            for eta in range(2):
                a("ds_read_b64_tr_b16 %s, v%d offset:%d" % (vr(BB[u % NB] + 2 * eta, 2), 20 + T, tau * 4096 + eta * 512)); q.append(("B", u))
            assert len(q) <= 15
        for u in range(min(look, len(units))): issue(u)
        for u in range(len(units)):
            tau, T = units[u]
            last = max(k for k, e in enumerate(q) if e == ("B", u))
            a("s_waitcnt lgkmcnt(%d)" % (len(q) - 1 - last))
            del q[:last + 1]
            a("v_mfma_f32_16x16x32_bf16 %s, %s, %s, %s" % (vr(acc + 4 * T, 4), vr(AB[tau % 3], 4), vr(BB[u % NB], 4), "0" if tau == 0 else vr(acc + 4 * T, 4)))
            if u + look < len(units): issue(u + look)

    if stamps:
        a("s_memrealtime s[64:65]")
        for k in range(1, NST): a("s_mov_b64 s[%d:%d], 0" % (64 + 2 * k, 65 + 2 * k))
        a("s_mov_b64 s[90:91], 0\ns_mov_b64 s[92:93], 0")
    a("s_cmp_ge_u32 s2, 256\ns_cbranch_scc1 L_end")
    a("s_load_dwordx16 s[4:19], s[0:1], 0\ns_load_dwordx8 s[20:27], s[0:1], 64")
    a("v_lshrrev_b32 v1, 6, v0\nv_and_b32 v0, 63, v0\ns_and_b32 s28, s2, 7\nv_readfirstlane_b32 s3, v1")
    a("s_lshl_b32 s28, s28, 5\ns_lshr_b32 s29, s2, 3\ns_add_u32 s28, s28, s29")
    a("s_lshr_b32 s29, s28, 4\ns_and_b32 s30, s28, 15")
    a("v_mov_b32 v1, 0\nv_lshrrev_b32 v3, 4, v0")
    a("s_cmp_lg_u32 s3, 0\ns_cbranch_scc1 L_noinit")
    a("v_lshlrev_b32 v2, 2, v0\nds_write_b32 v2, v1\ns_waitcnt lgkmcnt(0)")
    a.label("L_noinit")
    a("s_barrier")
    a("s_mov_b32 s58, 0xffffff00")
    a("s_lshl_b32 s32, s29, 2\ns_add_u32 s32, s32, s30\ns_mov_b32 s33, s32")
    a("s_cmp_lt_u32 s30, 4\ns_cbranch_scc1 L_roled")
    a("s_mul_i32 s32, s29, 9\ns_add_u32 s32, s32, s30\ns_sub_u32 s32, s32, 4\ns_add_u32 s33, s32, 64")
    a("s_cmp_lt_u32 s30, 13\ns_cbranch_scc1 L_roled")
    a("s_mul_i32 s32, s29, 3\ns_add_u32 s32, s32, s30\ns_sub_u32 s32, s32, 13")
    a.label("L_roled")
    a("v_lshrrev_b32 v4, 3, v0\nv_and_b32 v5, 7, v0\nv_and_b32 v6, 2, v4\nv_xor_b32 v5, v5, v6\nv_lshlrev_b32 v5, 4, v5\nv_xor_b32 v6, 64, v5")
    a("s_cmp_eq_u32 s3, 8\ns_cbranch_scc1 L_qaux")
    a.label("L_common2")
    a("v_bfe_u32 v7, v0, 2, 2\nv_lshl_add_u32 v8, v3, 3, v7\nv_lshlrev_b32 v8, 7, v8\nv_and_b32 v9, 3, v0\nv_lshl_add_u32 v8, v9, 3, v8")
    a("v_and_b32 v9, 1, v3\nv_lshlrev_b32 v9, 1, v9\nv_lshrrev_b32 v7, 1, v7\nv_or_b32 v9, v9, v7\nv_lshlrev_b32 v9, 5, v9")
    for T in range(4):
        a("v_xor_b32 v%d, %d, v9\nv_add_u32 v%d, v%d, v8" % (12 + T, T * 32, 12 + T, 12 + T))
    a("v_lshrrev_b32 v10, 2, v0\nv_xor_b32 v10, v10, v0\nv_and_b32 v10, 1, v10")
    a("s_cmp_eq_u32 s3, 8\ns_cbranch_scc1 L_qaux2")
    a("s_cmp_eq_u32 s3, 9\ns_cbranch_scc1 L_haux")
    a("s_cmp_eq_u32 s3, 10\ns_cbranch_scc1 L_loader")

    if pf:
        a("s_cmp_lg_u32 s3, 7\ns_cbranch_scc1 L_nopf")
        a("s_getpc_b64 s[60:61]")
        a.label("L_pfbase")
        a("v_lshlrev_b32 v2, 7, v0\nv_min_u32 v2, L_end-L_pfbase, v2\nglobal_load_dword v158, v2, s[60:61]\nv_add_u32 v2, 0x2000, v2\nv_min_u32 v2, L_end-L_pfbase, v2\nglobal_load_dword v159, v2, s[60:61]")
        a.label("L_nopf")
    a("v_bfe_u32 v16, v0, 2, 2\nv_lshlrev_b32 v16, 8, v16\nv_lshl_add_u32 v16, v3, 6, v16\nv_and_b32 v17, 3, v0\nv_lshl_add_u32 v16, v17, 4, v16")
    a("v_lshlrev_b32 v17, 4, v0")
    a("s_lshr_b32 s34, s30, 3\ns_lshl_b32 s34, s34, 4\ns_add_u32 s34, s34, s29\ns_lshl_b32 s34, s34, 13\ns_add_u32 s34, s34, 6144")
    a("s_and_b32 s35, s30, 7\ns_lshl_b32 s35, s35, 8\ns_add_u32 s34, s34, s35\ns_lshl_b32 s35, s3, 5\ns_add_u32 s34, s34, s35\ns_lshl_b32 s36, s34, 8")
    a("s_add_u32 s37, s28, s3")
    for t in range(8):
        a("s_add_u32 s34, s37, %d\ns_and_b32 s34, s34, 7\ns_lshl_b32 s34, s34, 10\ns_add_u32 s%d, s34, s36" % (t if rot else 0, 48 + t) if rot else "s_add_u32 s%d, s36, %d" % (48 + t, t * 1024))
    a("v_bfe_u32 v18, v0, 3, 1\nv_lshlrev_b32 v18, 8, v18\nv_lshl_add_u32 v18, v3, 6, v18\nv_and_b32 v19, 3, v0\nv_lshl_add_u32 v18, v19, 4, v18")
    a("v_and_b32 v19, 1, v0\nv_lshlrev_b32 v19, 4, v19\nv_mov_b32 v24, 0xffff\nv_lshlrev_b32 v24, v19, v24\nv_bfe_u32 v19, v0, 1, 2")
    for i in range(4):
        a("v_cmp_eq_u32 vcc, %d, v19\ns_nop 1\nv_cndmask_b32 v%d, 0, v24, vcc" % (i, 20 + i))
    a("s_mov_b32 s38, 0x%x" % f32bits(CSC))
    a("s_waitcnt lgkmcnt(0)")
    a("s_load_dword s56, s[26:27], 0")
    srd(40, 6, 64 << 20); srd(44, 8, 64 << 20)
    a("s_setprio 1")
    spin(FS1, sleep=0)
    stamp(1)
    KR, VR, DR = 64, 96, 128
    for t in range(16):
        if kvdepth and t >= kvdepth: a("s_waitcnt vmcnt(%d)" % (kvdepth - 1))
        if t < 8:
            a("buffer_load_dwordx4 %s, v16, s[40:43], s%d offen%s" % (vr(KR + 4 * t, 4), 48 + t, nt))
        else:
            a("buffer_load_dwordx4 %s, v17, s[44:47], s%d offen%s" % (vr(VR + 4 * (t - 8), 4), 48 + t - 8, nt))
    a("v_mov_b32 v2, 1\ns_mov_b64 exec, 1\nds_add_u32 v1, v2 offset:%d\ns_mov_b64 exec, -1" % CI)
    stamp(2)
    tag_setup()
    spin(FQ)
    stamp(3)
    a("ds_read_b128 v[24:27], v18 offset:%d\ns_waitcnt lgkmcnt(0)" % QV)
    for t in range(8):
        a("s_waitcnt vmcnt(%d)\nv_mfma_f32_16x16x32_bf16 %s, %s, v[24:27], 0" % (15 - t, vr(DR + 4 * t, 4), vr(KR + 4 * t, 4)))
    a("s_nop 7")
    S = 32
    for t in range(8): a("v_mov_b32_dpp v%d, v%d quad_perm:[0,0,0,0] row_mask:0xf bank_mask:0xf" % (S + t, DR + 4 * t))
    for i in range(1, 4):
        for t in range(8):
            a("v_add_f32_dpp v%d, v%d, v%d quad_perm:[%d,%d,%d,%d] row_mask:0xf bank_mask:0xf" % (S + t, DR + 4 * t + i, S + t, i, i, i, i))
    a("v_max3_f32 v28, v32, v33, v34\nv_max3_f32 v28, v28, v35, v36\nv_max3_f32 v28, v28, v37, v38\nv_max_f32 v28, v28, v39")
    xor_reduce("v_max_f32", ["v28"], ["v30"])
    a("v_mul_f32 v28, s38, v28")
    for t in range(8): a("v_fma_f32 v%d, v%d, s38, -v28" % (S + t, S + t))
    for t in range(8): a("v_exp_f32 v%d, v%d" % (S + t, S + t))
    a("s_nop 0")
    for t in range(8): a("v_cvt_pk_bf16_f32 v%d, v%d, v%d" % (40 + t, S + t, S + t))
    for t in range(8):
        for i in range(4): a("v_and_b32 v%d, v%d, v%d" % (DR + 4 * t + i, 40 + t, 20 + i))
    a("v_add_f32 v29, v32, v33\nv_add_f32 v30, v34, v35\nv_add_f32 v31, v36, v37\nv_add_f32 v32, v38, v39\nv_add_f32 v29, v29, v30\nv_add_f32 v31, v31, v32\nv_add_f32 v29, v29, v31")
    xor_reduce("v_add_f32", ["v29"], ["v30"])
    a("s_lshl_b32 s34, s3, 10\nv_lshl_add_u32 v30, v0, 4, s34\ns_lshl_b32 s34, s3, 9\nv_lshl_add_u32 v31, v0, 3, s34")
    a("ds_write_b64 v31, v[28:29] offset:%d" % ML)
    stamp(4)
    for t in range(8):
        a("s_waitcnt vmcnt(%d)\nv_mfma_f32_16x16x32_bf16 v[24:27], %s, %s, %s" % (7 - t, vr(VR + 4 * t, 4), vr(DR + 4 * t, 4), "0" if t == 0 else "v[24:27]"))
    a("v_mov_b32 v2, 1\ns_nop 6")
    a("ds_write_b128 v30, v[24:27] offset:%d" % ACC)
    a("s_mov_b64 exec, 1\nds_add_rtn_u32 v2, v1, v2 offset:%d\ns_mov_b64 exec, -1" % CA)
    a("v_lshlrev_b32 v30, 4, v0\nv_lshlrev_b32 v31, 3, v0")
    a("v_bfe_u32 v34, v0, 3, 1\nv_lshlrev_b32 v32, 13, v34\nv_lshrrev_b32 v35, 1, v3\nv_lshl_add_u32 v32, v35, 12, v32\nv_and_b32 v36, 1, v3\nv_lshl_add_u32 v32, v36, 7, v32\nv_and_b32 v36, 7, v0\nv_lshl_add_u32 v32, v36, 4, v32")
    a("v_lshlrev_b32 v33, 7, v34")
    a("s_waitcnt lgkmcnt(0)\nv_readfirstlane_b32 s34, v2")
    stamp(5)
    a("s_cmp_lg_u32 s34, 7\ns_cbranch_scc1 L_att_done")
    for w in range(8): a("ds_read_b64 %s, v31 offset:%d" % (vr(40 + 2 * w, 2), ML + w * 512))
    for w in range(7): a("ds_read_b128 %s, v30 offset:%d" % (vr(KR + 4 * w, 4), ACC + w * 1024))
    a("s_lshl_b32 s34, s29, 14\ns_lshl_b32 s35, s30, 8\ns_add_u32 s34, s34, s35")
    wsbase(60, "s34", OIN)
    a("s_lshl_b32 s34, s29, 8\ns_lshl_b32 s35, s30, 3\ns_add_u32 s34, s34, s35")
    wsbase(62, "s34", MLIN)
    a("s_waitcnt lgkmcnt(7)")
    a("ds_read_b128 %s, v30 offset:%d" % (vr(KR + 28, 4), ACC + 7 * 1024))
    a("v_max3_f32 v28, v40, v42, v44\nv_max3_f32 v28, v28, v46, v48\nv_max3_f32 v28, v28, v50, v52\nv_max_f32 v28, v28, v54\nv_and_b32 v28, s58, v28")
    for w in range(8): a("v_sub_f32 v%d, v%d, v28" % (40 + 2 * w, 40 + 2 * w))
    for w in range(8): a("v_exp_f32 v%d, v%d" % (40 + 2 * w, 40 + 2 * w))
    a("s_waitcnt lgkmcnt(0)")
    for i in range(4): a("v_mul_f32 v%d, v40, v%d" % (24 + i, KR + i))
    for w in range(1, 8):
        for i in range(4): a("v_fmac_f32 v%d, v%d, v%d" % (24 + i, 40 + 2 * w, KR + 4 * w + i))
    for i in range(4): a("v_bfi_b32 v%d, s58, v%d, v11" % (24 + i, 24 + i))
    a("global_store_dwordx4 v32, v[24:27], s[60:61] sc1")
    a("v_mul_f32 v29, v40, v41")
    for w in range(1, 8): a("v_fmac_f32 v29, v%d, v%d" % (40 + 2 * w, 41 + 2 * w))
    a("v_bfi_b32 v36, s58, v28, v11\nv_bfi_b32 v37, s58, v29, v11")
    a("s_mov_b64 exec, 0x101")
    a("global_store_dwordx2 v33, v[36:37], s[62:63] sc1")
    a("s_mov_b64 exec, -1")
    a.label("L_att_done")
    stamp(6)
    a("s_cmp_ge_u32 s30, 13\ns_cbranch_scc1 L_rpath")
    a("s_lshl_b32 s34, s3, 2\nv_mov_b32 v16, s34")
    spin(FW, vzero="v16")
    a("s_mov_b32 s39, s3")
    a.label("L_frag")
    stamp(7)
    BF = 64
    a("s_cmp_lt_u32 s30, 4\ns_cbranch_scc0 L_fragF")
    def frags(role):
        n = 8 if role == "O" else 4
        wb = WBO if role == "O" else WBF
        a("s_mul_i32 s34, s39, %d\ns_add_u32 s34, s34, %d" % (n * 1024, wb))
        for T in range(4): a("v_add_u32 v%d, s34, v%d" % (16 + T, 12 + T))
        cnt = 0
        for tau in range(n // 4):
            for T in range(4):
                for eta in range(2):
                    if cnt == 14: a("s_waitcnt lgkmcnt(6)"); cnt = 6
                    a("ds_read_b64_tr_b16 %s, v%d offset:%d" % (vr(BF + tau * 16 + T * 4 + eta * 2, 2), 16 + T, tau * 4096 + eta * 512)); cnt += 1
    frags("O")
    a("s_branch L_frag2")
    a.label("L_fragF")
    frags("F")
    a.label("L_frag2")
    a("v_bfe_u32 v20, v0, 3, 2\ns_mov_b32 s34, %d\nv_and_b32 v21, 7, v0\nv_lshlrev_b32 v21, 4, v21\nv_mad_u32_u24 v20, v20, s34, v21" % RSTRIDE)
    a("v_lshlrev_b32 v21, 7, v10\nv_lshl_add_u32 v21, v3, 4, v21\nv_and_b32 v22, 1, v3\nv_lshlrev_b32 v22, 2, v22")
    a("s_mul_i32 s34, s39, %d\ns_lshl_b32 s35, s33, 7\ns_add_u32 s34, s34, s35" % (4 * RSTRIDE))
    wsbase(60, "s34", RIN)
    spin(FA, val=2)
    stamp(8)
    a("ds_read_b128 v[24:27], v21 offset:%d\nds_read_b128 v[28:31], v21 offset:%d\nds_read_b32 v23, v22 offset:%d" % (AV, AV + 64, GS))
    a("s_waitcnt lgkmcnt(2)")
    for T in range(4): a("v_mfma_f32_16x16x32_bf16 %s, v[24:27], %s, 0" % (vr(32 + 4 * T, 4), vr(BF + 4 * T, 4)))
    a("s_cmp_lt_u32 s30, 4\ns_cbranch_scc0 L_gemv1")
    a("s_waitcnt lgkmcnt(1)")
    for T in range(4): a("v_mfma_f32_16x16x32_bf16 %s, v[28:31], %s, %s" % (vr(32 + 4 * T, 4), vr(BF + 16 + 4 * T, 4), vr(32 + 4 * T, 4)))
    a.label("L_gemv1")
    a("s_waitcnt lgkmcnt(0)\ns_nop 5")
    for T in range(4): a("v_mul_f32 v%d, v23, v%d" % (24 + T, 32 + 4 * T))
    for T in range(4): a("v_bfi_b32 v%d, s58, v%d, v11" % (24 + T, 24 + T))
    a("s_mov_b32 exec_hi, 0\nglobal_store_dwordx4 v20, v[24:27], s[60:61] sc1\ns_mov_b64 exec, -1")
    stamp(9)
    a("s_branch L_fin")

    a.label("L_loader")
    a("s_cmp_ge_u32 s30, 13\ns_cbranch_scc1 L_fin")
    a("s_movk_i32 s34, 1152\nv_mad_u32_u24 v16, v4, s34, v5\nv_mad_u32_u24 v17, v4, s34, v6\nv_mov_b32 v18, 1")
    a("s_waitcnt lgkmcnt(0)\ns_load_dword s56, s[26:27], 0")
    a("s_cmp_lt_u32 s30, 4\ns_cbranch_scc0 L_ldF")
    def wload(role):
        n = 8 if role == "O" else 4
        wb = WBO if role == "O" else WBF
        if role == "O": srd(48, 12, 4096 * 576 * 2)
        else: srd(48, 18, 4608 * 576 * 2)
        a("s_mul_i32 s36, s32, %d\ns_mov_b32 m0, %d" % (n * 8 * 1152, wb))
        tag_setup()
        spin(CI, val=8, sleep=2)
        stamp(1)
        tot = 9 * n
        flagged = 0
        ld = ldepth if role == "O" else ldepthF
        for k in range(tot):
            s_, rg = divmod(k, n)
            if k >= ld:
                a("s_waitcnt vmcnt(%d)" % (ld - 1))
                done = k - ld + 1
                while (flagged + 1) * n <= done:
                    a("ds_write_b32 v1, v18 offset:%d" % (FW + 4 * flagged)); flagged += 1
            a("buffer_load_dwordx4 %s, s[48:51], s36 offen%s lds" % ("v16" if rg % 2 == 0 else "v17", ntw))
            if k < tot - 1:
                a("s_add_u32 m0, m0, 1024")
                if rg < n - 1: a("s_add_u32 s36, s36, %d" % (8 * 1152))
                else: a("s_sub_u32 s36, s36, %d" % ((n - 1) * 8 * 1152 - 128))
        stamp(2)
        while flagged < 8:
            a("s_waitcnt vmcnt(%d)\nds_write_b32 v1, v18 offset:%d" % (tot - (flagged + 1) * n, FW + 4 * flagged)); flagged += 1
        a("s_mov_b32 s39, 8\ns_waitcnt vmcnt(0)")
        a("s_branch L_frag")
    wload("O")
    a.label("L_ldF")
    wload("F")

    a.label("L_rpath")
    a("s_cmp_ge_u32 s32, 36\ns_cbranch_scc1 L_fin")
    a("s_mul_i32 s34, s32, %d\ns_mul_i32 s35, s3, 3072\ns_add_u32 s34, s34, s35" % RSTRIDE)
    wsbase(60, "s34", RIN)
    a("v_lshlrev_b32 v16, 4, v0\ns_cmp_eq_u32 s3, 8\ns_cselect_b32 s35, 1, 2\ns_cselect_b32 s36, 0, 1.0\ns_lshl_b32 s35, s35, 10\nv_add_u32 v17, s35, v16")
    poll([(32, "global_load_dwordx4 v[32:35], v16, s[60:61] sc1"),
          (36, "global_load_dwordx4 v[36:39], v16, s[60:61] offset:1024 sc1"),
          (40, "global_load_dwordx4 v[40:43], v17, s[60:61] sc1")], "v18", "R", rsleep)
    stamp(8)
    for i in range(4): a("v_add_f32 v%d, v%d, v%d" % (32 + i, 32 + i, 36 + i))
    for i in range(4): a("v_fma_f32 v%d, v%d, s36, v%d" % (32 + i, 40 + i, 32 + i))
    a("s_nop 0")
    for i in range(4): a("v_add_f32_dpp v%d, v%d, v%d row_ror:8 row_mask:0xf bank_mask:0xf" % (32 + i, 32 + i, 32 + i))
    xor_reduce("v_add_f32", ["v32", "v33", "v34", "v35"], ["v36", "v37", "v38", "v39"])
    a("v_and_b32 v16, 7, v0\nv_lshlrev_b32 v16, 4, v16\ns_lshl_b32 s34, s3, 7\nv_add_u32 v17, s34, v16\nv_mov_b32 v2, 1")
    a("ds_write_b128 v17, v[32:35] offset:%d" % WQ)
    a("s_mov_b64 exec, 1\nds_add_rtn_u32 v2, v1, v2 offset:%d\ns_mov_b64 exec, -1" % CR)
    a("s_lshr_b32 s34, s32, 2\ns_lshl_b32 s34, s34, 7\ns_bfe_u32 s35, s32, 0x10001\ns_mul_i32 s35, s35, 1152\ns_add_u32 s34, s34, s35\ns_and_b32 s35, s32, 1\ns_lshl_b32 s35, s35, 4\ns_add_u32 s34, s34, s35")
    a("v_lshrrev_b32 v17, 3, v16\nv_add_u32 v17, s34, v17")
    a("s_waitcnt lgkmcnt(0)\nv_readfirstlane_b32 s34, v2")
    a("s_cmp_lg_u32 s34, 8\ns_cbranch_scc1 L_fin")
    for w in range(9): a("ds_read_b128 %s, v16 offset:%d" % (vr(64 + 4 * w, 4), WQ + w * 128))
    for w in range(1, 9):
        a("s_waitcnt lgkmcnt(%d)" % (8 - w))
        a("v_pk_add_f32 v[64:65], v[64:65], %s\nv_pk_add_f32 v[66:67], v[66:67], %s" % (vr(64 + 4 * w, 2), vr(66 + 4 * w, 2)))
    a("v_cvt_pk_bf16_f32 v32, v64, v65\nv_cvt_pk_bf16_f32 v33, v66, v67")
    a("s_mov_b64 exec, 0xff")
    a("global_store_short v17, v32, s[22:23]\nglobal_store_short_d16_hi v17, v32, s[22:23] offset:32\nglobal_store_short v17, v33, s[22:23] offset:64\nglobal_store_short_d16_hi v17, v33, s[22:23] offset:96")
    a("s_cmp_lg_u32 s32, 0\ns_cbranch_scc1 L_rdone")
    a("s_add_u32 s34, s56, 1\nv_mov_b32 v2, s34\ns_mov_b64 exec, 1\nglobal_store_dword v1, v2, s[26:27]")
    a.label("L_rdone")
    a("s_mov_b64 exec, -1")
    stamp(9)
    a("s_branch L_fin")

    a.label("L_qaux")
    a("s_setprio 3")
    a("v_lshl_add_u32 v17, v4, 13, v5\nv_lshl_add_u32 v18, v4, 13, v6\nv_lshlrev_b32 v16, 4, v0")
    a("s_and_b32 s34, s28, 3\ns_mul_i32 s36, s34, %d\ns_lshr_b32 s35, s28, 2\ns_lshl_b32 s35, s35, 7\ns_add_u32 s36, s36, s35" % (144 * 8192))
    a("s_mov_b32 m0, %d\ns_waitcnt lgkmcnt(0)" % XS)
    srd(40, 4, 2304)
    for k in range(3): a("buffer_load_dwordx4 v16, s[40:43], 0 offen offset:%d lds" % (k * 1024))
    srd(48, 10, 576 * 4096 * 2)
    a("s_mov_b32 m0, %d\ns_load_dword s56, s[26:27], 0" % WQ)
    for rg in range(18):
        a("buffer_load_dwordx4 %s, s[48:51], s36 offen%s lds" % ("v17" if rg % 2 == 0 else "v18", ntw))
        if rg < 17: a("s_add_u32 m0, m0, 1024\ns_add_u32 s36, s36, %d" % (8 * 8192))
    setflag(FS0)
    a("v_mov_b32 v20, 0\nv_mov_b32 v21, 0\nv_mov_b32 v22, 0\nv_mov_b32 v23, 0")
    a("ds_write_b128 v16, v[20:23] offset:%d\nds_write_b128 v16, v[20:23] offset:%d" % (WQ + 144 * 128, WQ + 152 * 128))
    a("s_branch L_common2")
    a.label("L_qaux2")
    stamp(1)
    tag_setup()
    a("v_and_b32 v16, 15, v0\nv_lshlrev_b32 v16, 4, v16\nv_lshl_add_u32 v17, v3, 12, v16")
    a("s_lshl_b32 s34, s29, 13\ns_and_b32 s35, s28, 3\ns_lshl_b32 s35, s35, 10\ns_add_u32 s34, s34, s35\ns_bfe_u32 s35, s28, 0x20002\ns_lshl_b32 s35, s35, 8\ns_add_u32 s34, s34, s35")
    wsbase(60, "s34", QIN)
    a("s_lshl_b32 s34, s29, 13\ns_lshr_b32 s35, s30, 3\ns_lshl_b32 s35, s35, 12\ns_add_u32 s34, s34, s35")
    wsbase(62, "s34", QIN)
    a("s_and_b32 s35, s28, 3\ns_mul_i32 s35, s35, 288")
    gemv1(5, WQ, "s35", 32, lambda tau: max(0, 18 - 4 * (tau + 1)))
    setflag(FS0 + 16)
    stamp(2)
    a("s_nop 3")
    for T in range(4): a("v_bfi_b32 v%d, s58, v%d, v11" % (24 + T, 32 + 4 * T))
    a("s_mov_b32 exec_hi, 0\nglobal_store_dwordx4 v17, v[24:27], s[60:61] sc1\ns_mov_b64 exec, -1")
    stamp(3)
    a("v_lshlrev_b32 v16, 4, v0")
    a("v_and_b32 v17, 15, v0\nv_lshlrev_b32 v17, 1, v17\nv_lshl_add_u32 v17, v3, 7, v17")
    poll([(64 + 4 * k, "global_load_dwordx4 %s, v16, s[62:63] offset:%d sc1" % (vr(64 + 4 * k, 4), 1024 * k)) for k in range(4)], "v18", "Q", poll_sleep)
    for i in range(4): a("v_add_f32 v%d, v%d, v%d\nv_add_f32 v%d, v%d, v%d" % (64 + i, 64 + i, 68 + i, 72 + i, 72 + i, 76 + i))
    for i in range(4): a("v_add_f32 v%d, v%d, v%d" % (64 + i, 64 + i, 72 + i))
    a("v_cvt_pk_bf16_f32 v64, v64, v65\nv_cvt_pk_bf16_f32 v65, v66, v67")
    a("ds_write_b16 v17, v64 offset:%d\nds_write_b16_d16_hi v17, v64 offset:%d\nds_write_b16 v17, v65 offset:%d\nds_write_b16_d16_hi v17, v65 offset:%d" % (QV, QV + 32, QV + 64, QV + 96))
    setflag(FQ)
    stamp(4)
    a("s_cmp_ge_u32 s30, 13\ns_cbranch_scc1 L_rpath")
    a("s_cmp_lt_u32 s30, 4\ns_cbranch_scc0 L_fin")
    a("s_lshl_b32 s34, s32, 12")
    wsbase(60, "s34", OIN)
    a("s_lshr_b32 s34, s32, 1\ns_lshl_b32 s34, s34, 7")
    wsbase(62, "s34", MLIN)
    a("v_lshrrev_b32 v18, 5, v0\nv_and_b32 v19, 1, v3\nv_lshlrev_b32 v16, 11, v18\nv_lshl_add_u32 v16, v19, 8, v16\nv_and_b32 v20, 15, v0\nv_lshl_add_u32 v16, v20, 4, v16")
    a("v_lshlrev_b32 v17, 6, v18\nv_lshl_add_u32 v17, v19, 3, v17")
    a("v_lshlrev_b32 v21, 7, v18\nv_bfe_u32 v19, v0, 3, 1\nv_lshl_add_u32 v21, v19, 6, v21\nv_and_b32 v19, 7, v0\nv_lshl_add_u32 v21, v19, 1, v21")
    spin(CA, val=8, sleep=2)
    stamp(5)
    OD, OM = 96, 112
    if ogate:
        a("s_mov_b32 s59, 0")
        a.label("L_ogate")
        a("s_load_dwordx16 s[4:19], s[62:63], 0 glc\ns_load_dwordx16 s[40:55], s[62:63], 64 glc\ns_waitcnt lgkmcnt(0)")
        a("s_xor_b32 s34, s4, s57")
        for r in list(range(6, 20, 2)) + list(range(40, 56, 2)):
            a("s_xor_b32 s35, s%d, s57\ns_or_b32 s34, s34, s35" % r)
        a("s_and_b32 s34, s34, 0xff\ns_cbranch_scc0 L_ogated\ns_add_u32 s59, s59, 1\ns_cmp_lt_u32 s59, 64\ns_cbranch_scc1 L_ogate")
        a.label("L_ogated")
        if stamps: a("s_mov_b32 s91, s59")
        stamp(8)
    poll([(OM + 4 * k, "global_load_dwordx2 %s, v17, s[62:63] offset:%d sc1" % (vr(OM + 4 * k, 2), 16 * k), 2) for k in range(4)] +
         [(OD + 4 * k, "global_load_dwordx4 %s, v16, s[60:61] offset:%d sc1" % (vr(OD + 4 * k, 4), 512 * k)) for k in range(4)], "v18", "O", poll_sleep)
    stamp(6)
    a("v_max3_f32 v24, v%d, v%d, v%d\nv_max_f32 v24, v24, v%d" % (OM, OM + 4, OM + 8, OM + 12))
    a("v_mov_b32 v25, v24\ns_nop 1\nv_permlane16_swap_b32 v24, v25\nv_max_f32 v24, v24, v25")
    for k in range(4): a("v_sub_f32 v%d, v%d, v24" % (OM + 4 * k, OM + 4 * k))
    for k in range(4): a("v_exp_f32 v%d, v%d" % (OM + 4 * k, OM + 4 * k))
    a("s_nop 0\nv_mul_f32 v28, v%d, v%d" % (OM, OM + 1))
    for k in range(1, 4): a("v_fmac_f32 v28, v%d, v%d" % (OM + 4 * k, OM + 4 * k + 1))
    for i in range(4): a("v_mul_f32 v%d, v%d, v%d" % (24 + i, OM, OD + i))
    for k in range(1, 4):
        for i in range(4): a("v_fmac_f32 v%d, v%d, v%d" % (24 + i, OM + 4 * k, OD + 4 * k + i))
    for i in (4, 0, 1, 2, 3): a("v_mov_b32 v%d, v%d" % (32 + i, 24 + i))
    for i in (4, 0, 1, 2, 3): a("v_permlane16_swap_b32 v%d, v%d" % (24 + i, 32 + i))
    a("v_add_f32 v28, v28, v36\nv_rcp_f32 v28, v28")
    for i in range(4): a("v_add_f32 v%d, v%d, v%d" % (24 + i, 24 + i, 32 + i))
    for i in range(4): a("v_mul_f32 v%d, v%d, v28" % (24 + i, 24 + i))
    a("v_cvt_pk_bf16_f32 v24, v24, v25\nv_cvt_pk_bf16_f32 v25, v26, v27\nv_mov_b32 v2, 1")
    a("ds_write_b16 v21, v24 offset:%d\nds_write_b16_d16_hi v21, v24 offset:%d\nds_write_b16 v21, v25 offset:%d\nds_write_b16_d16_hi v21, v25 offset:%d" % (AV, AV + 16, AV + 32, AV + 48))
    a("s_mov_b64 exec, 1\nds_add_u32 v1, v2 offset:%d\ns_mov_b64 exec, -1" % FA)
    stamp(7)
    a("s_branch L_fin")

    a.label("L_haux")
    a("s_setprio 3")
    a("s_movk_i32 s34, 9216\nv_mad_u32_u24 v19, v4, s34, v5\nv_mad_u32_u24 v20, v4, s34, v6\nv_lshlrev_b32 v16, 4, v0")
    a("s_and_b32 s34, s32, 1\ns_mul_i32 s36, s34, %d\ns_lshr_b32 s35, s32, 1\ns_lshl_b32 s35, s35, 7\ns_add_u32 s36, s36, s35" % (288 * 9216))
    a("s_mov_b32 m0, %d\ns_waitcnt lgkmcnt(0)\ns_load_dword s56, s[26:27], 0" % GW)
    srd(44, 20, 1152); srd(52, 16, 576 * 4608 * 2)
    spin(FS0, sleep=0)
    a("s_cmp_lt_u32 s30, 4\ns_cbranch_scc1 L_h_nf\ns_cmp_ge_u32 s30, 13\ns_cbranch_scc1 L_h_r")
    for k in range(2): a("buffer_load_dwordx4 v16, s[44:47], 0 offen offset:%d lds" % (k * 1024))
    a("s_mov_b32 m0, %d\ns_nop 0" % W1)
    for rg in range(36):
        if w1depth and rg >= w1depth: a("s_waitcnt vmcnt(%d)" % (w1depth - 1))
        a("buffer_load_dwordx4 %s, s[52:55], s36 offen%s lds" % ("v19" if rg % 2 == 0 else "v20", ntw))
        if rg < 35: a("s_add_u32 m0, m0, 1024\ns_add_u32 s36, s36, %d" % (8 * 9216))
    if fs1wait is not None: a("s_waitcnt vmcnt(%d)" % fs1wait)
    setflag(FS1)
    stamp(1)
    tag_setup()
    spin(FS0 + 16)
    a("s_and_b32 s35, s32, 1\ns_mul_i32 s35, s35, 576")
    gemv1(9, W1, "s35", 32, lambda tau: 36 - 4 * (tau + 1))
    stamp(2)
    a("s_bitcmp1_b32 s32, 0\ns_cselect_b64 s[62:63], -1, 0")
    a("s_xor_b32 s34, s32, 1\ns_lshl_b32 s34, s34, 8")
    wsbase(60, "s34", HIN)
    a("v_and_b32 v16, 15, v0\nv_lshlrev_b32 v16, 4, v16\ns_nop 1")
    for k, (lo, hi) in enumerate([(32, 40), (33, 41), (36, 44), (37, 45)]):
        a("v_cndmask_b32 v%d, v%d, v%d, s[62:63]\nv_cndmask_b32 v%d, v%d, v%d, s[62:63]" % (48 + k, lo, hi, 24 + k, hi, lo))
    for k in range(4): a("v_bfi_b32 v%d, s58, v%d, v11" % (24 + k, 24 + k))
    a("s_mov_b64 exec, 0xffff\nglobal_store_dwordx4 v16, v[24:27], s[60:61] sc1\ns_mov_b64 exec, -1")
    stamp(3)
    a("s_branch L_gate")
    a.label("L_h_r")
    setflag(FS1)
    a("s_branch L_fin")
    a.label("L_h_nf")
    setflag(FS1)
    for k in range(2): a("buffer_load_dwordx4 v16, s[44:47], 0 offen offset:%d lds" % (k * 1024))
    spin(FS0 + 16)
    a("s_waitcnt vmcnt(0)")
    a.label("L_gate")
    a("v_and_b32 v16, 31, v0\nv_lshlrev_b32 v16, 2, v16\nv_lshrrev_b32 v17, 5, v0\ns_movk_i32 s34, 1152\nv_mad_u32_u24 v17, v17, s34, v16")
    for k in range(9):
        a("ds_read_b32 v%d, v17 offset:%d" % (64 + k, XS + 128 * k))
        if k == 6: a("s_waitcnt lgkmcnt(4)")
    for k in range(9):
        a("ds_read_b32 v%d, v16 offset:%d" % (76 + k, GW + 128 * k))
        if k in (2, 6): a("s_waitcnt lgkmcnt(6)")
    a("s_mov_b32 s35, 0xffff0000\nv_mov_b32 v18, 0\ns_waitcnt lgkmcnt(0)")
    for k in range(9):
        x, w = 64 + k, 76 + k
        a("v_lshlrev_b32 v20, 16, v%d\nv_and_b32 v21, s35, v%d\nv_lshlrev_b32 v22, 16, v%d\nv_and_b32 v23, s35, v%d" % (x, x, w, w))
        a("v_mul_f32 v20, v20, v22\nv_mul_f32 v21, v21, v23\nv_cvt_pk_bf16_f32 v20, v20, v21\nv_lshlrev_b32 v21, 16, v20\nv_and_b32 v20, s35, v20\nv_add_f32 v18, v18, v21\nv_add_f32 v18, v18, v20")
    a("s_nop 1")
    for sh in (1, 2, 4, 8):
        a("v_add_f32_dpp v18, v18, v18 row_ror:%d row_mask:0xf bank_mask:0xf\ns_nop 1" % sh)
    a("v_mov_b32 v19, v18\ns_nop 1\nv_permlane16_swap_b32 v18, v19\nv_add_f32 v18, v18, v19")
    a("v_cvt_pk_bf16_f32 v18, v18, v18\nv_and_b32 v18, s35, v18\nv_mul_f32 v18, 0x%x, v18\nv_exp_f32 v18, v18\ns_nop 0\nv_add_f32 v18, 1.0, v18\nv_rcp_f32 v18, v18\ns_nop 0" % f32bits(-math.log2(math.e)))
    a("v_cvt_pk_bf16_f32 v18, v18, v18\nv_and_b32 v18, s35, v18\nv_sub_f32 v19, 1.0, v18\nv_cvt_pk_bf16_f32 v19, v19, v19\nv_and_b32 v19, s35, v19")
    a("v_lshrrev_b32 v17, 5, v0\nv_lshlrev_b32 v17, 2, v17\nv_mov_b32 v2, 1")
    a("s_cmp_lt_u32 s30, 4\ns_cbranch_scc0 L_h_f")
    a("ds_write_b32 v17, v18 offset:%d" % GS)
    a("s_mov_b64 exec, 1\nds_add_u32 v1, v2 offset:%d\ns_mov_b64 exec, -1" % FA)
    a("s_branch L_fin")
    a.label("L_h_f")
    a("ds_write_b32 v17, v19 offset:%d" % GS)
    a("s_lshl_b32 s34, s32, 8")
    wsbase(60, "s34", HIN)
    a("v_and_b32 v16, 15, v0\nv_lshlrev_b32 v17, 1, v16\nv_lshlrev_b32 v16, 4, v16")
    stamp(4)
    poll([(64, "global_load_dwordx4 v[64:67], v16, s[60:61] sc1")], "v18", "H", poll_sleep)
    for k in range(4): a("v_add_f32 v%d, v%d, v%d\nv_max_f32 v%d, 0, v%d" % (64 + k, 64 + k, 48 + k, 64 + k, 64 + k))
    a("v_cvt_pk_bf16_f32 v64, v64, v65\nv_cvt_pk_bf16_f32 v65, v66, v67\ns_mov_b64 exec, 0xffff")
    a("ds_write_b16 v17, v64 offset:%d\nds_write_b16_d16_hi v17, v64 offset:%d\nds_write_b16 v17, v65 offset:%d\nds_write_b16_d16_hi v17, v65 offset:%d" % (AV, AV + 128, AV + 32, AV + 160))
    a("v_mov_b32 v2, 2\ns_mov_b64 exec, 1\nds_write_b32 v1, v2 offset:%d\ns_mov_b64 exec, -1" % FA)
    stamp(5)

    a.label("L_fin")
    if dbgmax:
        stamp(NST - 1)
        a("s_mov_b64 exec, 1")
        def put(slot, k):
            a("v_mov_b32 v12, s%d\nglobal_store_dword v1, v12, s[24:25] offset:%d\ns_nop 1" % (64 + 2 * k, 4 * slot))
        a("s_cmp_lg_u32 s28, 13\ns_cbranch_scc1 L_dbg2\ns_cmp_eq_u32 s82, 0\ns_cbranch_scc1 L_end")
        for slot, k in enumerate((0, 1, 2, 3, 6, 8, 9, NST - 1)): put(slot, k)
        a("s_branch L_end")
        a.label("L_dbg2")
        a("s_cmp_lg_u32 s28, 0\ns_cbranch_scc1 L_end\ns_cmp_lg_u32 s3, 8\ns_cbranch_scc1 L_end")
        for slot, k in enumerate((0, 1, 2, 3, 4, 5, 6, 7)): put(8 + slot, k)
    elif stamps:
        stamp(NST - 1)
        a("s_mul_i32 s34, s2, %d\ns_add_u32 s34, s34, s3\ns_lshl_b32 s34, s34, 7" % NW)
        wsbase(60, "s34", 0x8000000)
        a("s_mov_b64 exec, 1")
        for k in range(NST):
            a("v_mov_b32 v12, s%d\nv_mov_b32 v13, s%d\nglobal_store_dwordx2 v1, v[12:13], s[60:61] offset:%d\ns_nop 1" % (64 + 2 * k, 65 + 2 * k, 8 * k))
        for k in range(4):
            a("v_mov_b32 v12, s%d\nv_mov_b32 v13, 0\nglobal_store_dwordx2 v1, v[12:13], s[60:61] offset:%d\ns_nop 1" % (90 + k, 8 * (NST + k)))
    a.label("L_end")
    a("s_endpgm")
    return wrap(a.text(), 256, NW * 64, LDS_TOTAL, 160)

if __name__ == "__main__":
    open("v3.s", "w").write(gen(kvdepth=3, ldepth=24, rsleep=1))
    open("v3s.s", "w").write(gen(stamps=True, kvdepth=3, ldepth=24, rsleep=1))
    open("v3s_b.s", "w").write(gen(stamps=True, kvdepth=4, ldepth=32, ldepthF=24, rsleep=1))
    open("v3s_c.s", "w").write(gen(stamps=True, kvdepth=3, ldepth=32, ldepthF=16, rsleep=8))
    open("v3_dbg.s", "w").write(gen(stamps=True, dbgmax=True, kvdepth=3, ldepth=24, rsleep=1))
    open("v3_dbg_nont.s", "w").write(gen(nt="", stamps=True, dbgmax=True, kvdepth=3, ldepth=24, rsleep=1))
    open("v3_nont.s", "w").write(gen(nt="", kvdepth=3, ldepth=24, rsleep=1))
```

```python
import sys, math, struct
from asmlib import *

FQ, FA, FW, CA, CR, FS0, FH, CI, FX = 0, 4, 8, 64, 68, 72, 76, 80, 88
QV, AV, GS, XS, GW = 256, 768, 1024, 2048, 5120
ACC, ML, WQ, WB, LDS_TOTAL = 8192, 16384, 20480, 40960, 114688
QIN, HIN, OIN, MLIN, RIN = 0x1000, 0x40000, 0x80000, 0xC8000, 0x100000
FASTOFF = 0x200000
NPROD = 136
RSTRIDE = NPROD * 64
CSC = math.log2(math.e) / math.sqrt(128.0)
def f32bits(x): return struct.unpack("<I", struct.pack("<f", x))[0]
NW, NST, RMAX = 11, 12, 10
def pack(vals, bits): return sum(v << (bits * k) for k, v in enumerate(vals))
RO, RF, RH, RX = 0, 1, 2, 3
def tables(g=9, hA=(4, 4, 4, 4), hB=(6, 6, 6), hC=(4, 5), gx=None):
    T = [
        [(RO, 0, g), (RO, 1, g), (RF, 0, g), (RF, 1, g), (RH, 0, hA[0]), (RH, 8, hA[1]), (RX, 0, 0), (RX, 0, 0)],
        [(RO, 0, g), (RO, 1, g), (RF, 2, g), (RF, 3, g), (RH, 1, hA[2]), (RH, 2, hA[3]), (RX, 0, 0), (RX, 0, 0)],
        [(RO, 0, g), (RO, 1, g), (RF, 4, g), (RF, 5, g), (RH, 5, hB[0]), (RH, 6, hB[1]), (RH, 7, hB[2]), (RX, 0, 0)],
        [(RO, 0, g), (RO, 1, g), (RF, 6, g), (RF, 7, g), (RF, 8, g), (RH, 3, hC[0]), (RH, 4, hC[1]), (RX, 0, 0)],
    ]
    out = []
    for P in T:
        rest = 64 - sum(r for _, _, r in P); nx = sum(1 for e in P if e[0] == RX)
        xs = [rest // nx + (1 if k < rest % nx else 0) for k in range(nx)]
        P = [(ro, ix, r if ro != RX else xs.pop(0)) for ro, ix, r in P]
        assert sum(r for _, _, r in P) == 64 and all(4 <= r <= RMAX for _, _, r in P), P
        out.append(P)
    return out

def gen(nt=" nt", stamps=False, pf=True, rsleep=0, ldepth=32, kd=3, vd=4, look=6, hahead=9, psleep=1, tab=None):
    if tab is None: tab = tables()
    RSET = sorted({r for P in tab for _, _, r in P} - {RMAX})
    NABS = RMAX - min(RSET)
    a = Asm()
    def stamp(k):
        if stamps:
            a("s_memrealtime s[%d:%d]\ns_waitcnt lgkmcnt(0)" % (64 + 2 * k, 65 + 2 * k))
    def srd(d, p, n):
        a("s_mov_b32 s%d, s%d\ns_mov_b32 s%d, s%d\ns_mov_b32 s%d, 0x%x\ns_mov_b32 s%d, 0x20000" % (d, p, d + 1, p + 1, d + 2, n, d + 3))
    def wsbase(d, s_off, const):
        a("s_add_u32 s%d, %s, 0x%x\ns_add_u32 s%d, s26, s%d\ns_addc_u32 s%d, s27, 0" % (d, s_off, const, d, d, d + 1))
    def spin(flag_off, vtmp="v2", vzero="v1", val=None, sleep=1):
        l = a.newlabel("L_spin"); d = a.newlabel("L_spun")
        a.label(l)
        a("ds_read_b32 %s, %s offset:%d\ns_waitcnt lgkmcnt(0)\nv_readfirstlane_b32 s34, %s" % (vtmp, vzero, flag_off, vtmp))
        a("s_cmp_lg_u32 s34, 0" if val is None else "s_cmp_eq_u32 s34, %d" % val)
        a("s_cbranch_scc1 %s" % d)
        if sleep: a("s_sleep %d" % sleep)
        a("s_branch %s" % l)
        a.label(d)
    def setflag(flag_off, vone="v2", vzero="v1"):
        a("v_mov_b32 %s, 1\nds_write_b32 %s, %s offset:%d" % (vone, vzero, vone, flag_off))
    def addflag(flag_off):
        a("v_mov_b32 v2, 1\ns_mov_b64 exec, 1\nds_add_u32 v1, v2 offset:%d\ns_mov_b64 exec, -1" % flag_off)
    def xor_reduce(op, regs, tmps):
        for sw in ("v_permlane16_swap_b32", "v_permlane32_swap_b32"):
            for r, t in zip(regs, tmps): a("v_mov_b32 %s, %s" % (t, r))
            pad = max(0, 2 - (len(regs) - 1))
            if pad: a("s_nop %d" % (pad - 1))
            for r, t in zip(regs, tmps): a("%s %s, %s" % (sw, r, t))
            for r, t in zip(regs, tmps): a("%s %s, %s, %s" % (op, r, r, t))
    def poll(loads, vacc, lbl, sleep=0, voffs=()):
        l = a.newlabel("L_poll" + lbl); d = a.newlabel("L_polled" + lbl)
        a("s_mov_b32 s59, 0")
        for b in voffs: a("v_mov_b32 v%d, v%d" % (b + 40, b))
        a.label(l)
        if voffs:
            a("s_and_b32 s34, s59, 15\ns_cmp_eq_u32 s34, 15\ns_cselect_b32 s34, 0, 0x%x" % FASTOFF)
            for b in voffs: a("v_add_u32 v%d, s34, v%d" % (b, b + 40))
        for ld_ in loads: a(ld_[1])
        a("s_waitcnt vmcnt(0)")
        regs = [ld_[0] + k for ld_ in loads for k in range(ld_[2] if len(ld_) > 2 else 4)]
        for r in regs: a("v_xor_b32 v%d, s57, v%d" % (r, r))
        a("v_or3_b32 %s, v%d, v%d, v%d" % (vacc, regs[0], regs[1], regs[2]))
        rest = regs[3:]
        while rest:
            if len(rest) >= 2:
                a("v_or3_b32 %s, %s, v%d, v%d" % (vacc, vacc, rest[0], rest[1])); rest = rest[2:]
            else:
                a("v_or_b32 %s, %s, v%d" % (vacc, vacc, rest[0])); rest = rest[1:]
        a("v_and_b32 %s, 0xff, %s\nv_cmp_ne_u32 vcc, 0, %s" % (vacc, vacc, vacc))
        a("s_cbranch_vccz %s" % d)
        a("s_add_u32 s59, s59, 1\ns_cmp_lt_u32 s59, 0x10000\ns_cbranch_scc0 %s" % d)
        if sleep: a("s_sleep %d" % sleep)
        a("s_branch %s" % l)
        a.label(d)
        if stamps: a("s_mov_b32 s%d, s59" % (90 + {"Q": 0, "H": 1, "O": 2, "R": 3}[lbl]))
    def publish(voff, vtmp, data, base, width=4):
        a("v_add_u32 %s, 0x%x, %s\nglobal_store_dwordx%d %s, %s, %s" % (vtmp, FASTOFF, voff, width, vtmp, data, base))
        a("global_store_dwordx%d %s, %s, %s sc1" % (width, voff, data, base))
    def tag_setup():
        a("s_waitcnt lgkmcnt(0)\ns_add_u32 s57, s56, 1\ns_and_b32 s57, s57, 0xff\nv_mov_b32 v11, s57")
    def gemv1(nsteps, wbase, s_k0bytes, acc, issued0, total, dma=None):
        a("s_movk_i32 s34, 1152\nv_mul_lo_u32 v16, v10, s34\nv_lshl_add_u32 v16, v3, 4, v16")
        if s_k0bytes: a("v_add_u32 v16, %s, v16" % s_k0bytes)
        for T in range(4): a("v_add_u32 v%d, %d, v%d" % (20 + T, wbase, 12 + T))
        if nsteps > 15:
            for T in range(4): a("v_add_u32 v%d, %d, v%d" % (52 + T, wbase + 15 * 4096, 12 + T))
        units = [(tau, T) for tau in range(nsteps) for T in range(4)]
        AB = [24, 28, 100]
        NB = look + 1
        BB = [64 + 4 * k for k in range(NB)]
        q = []
        vm = [issued0]
        def issue(u):
            tau, T = units[u]
            if T == 0:
                need = min(total, 4 * (tau + 1))
                assert vm[0] >= need, (tau, vm[0], need)
                a("s_waitcnt vmcnt(%d)" % (vm[0] - need))
                a("ds_read_b128 %s, v16 offset:%d" % (vr(AB[tau % 3], 4), XS + tau * 64)); q.append(("A", tau))
            for eta in range(2):
                ar, of = (20 + T, tau * 4096) if tau < 15 else (52 + T, (tau - 15) * 4096)
                a("ds_read_b64_tr_b16 %s, v%d offset:%d" % (vr(BB[u % NB] + 2 * eta, 2), ar, of + eta * 512)); q.append(("B", u))
            assert len(q) <= 15
        for u in range(min(look, len(units))): issue(u)
        for u in range(len(units)):
            tau, T = units[u]
            last = max(k for k, e in enumerate(q) if e == ("B", u))
            a("s_waitcnt lgkmcnt(%d)" % (len(q) - 1 - last))
            del q[:last + 1]
            a("v_mfma_f32_16x16x32_bf16 %s, %s, %s, %s" % (vr(acc + 4 * T, 4), vr(AB[tau % 3], 4), vr(BB[u % NB], 4), "0" if tau == 0 else vr(acc + 4 * T, 4)))
            if T == 1 and dma is not None: vm[0] += dma(tau)
            if u + look < len(units): issue(u + look)

    if stamps:
        a("s_memrealtime s[64:65]")
        for k in range(1, NST): a("s_mov_b64 s[%d:%d], 0" % (64 + 2 * k, 65 + 2 * k))
        a("s_mov_b64 s[90:91], 0\ns_mov_b64 s[92:93], 0")
    a("s_cmp_ge_u32 s2, 256\ns_cbranch_scc1 L_end")
    a("s_load_dwordx16 s[4:19], s[0:1], 0\ns_load_dwordx8 s[20:27], s[0:1], 64")
    a("v_lshrrev_b32 v1, 6, v0\nv_and_b32 v0, 63, v0\ns_and_b32 s28, s2, 7\nv_readfirstlane_b32 s3, v1")
    a("s_lshl_b32 s28, s28, 5\ns_lshr_b32 s29, s2, 3\ns_add_u32 s28, s28, s29")
    a("v_mov_b32 v1, 0\nv_lshrrev_b32 v3, 4, v0")
    a("s_cmp_lg_u32 s3, 0\ns_cbranch_scc1 L_noinit")
    a("v_lshlrev_b32 v2, 2, v0\nds_write_b32 v2, v1\ns_waitcnt lgkmcnt(0)")
    a.label("L_noinit")
    a("s_barrier")
    a("s_lshr_b32 s29, s28, 4\ns_and_b32 s30, s28, 15\ns_mov_b32 s58, 0xffffff00")
    a("v_lshrrev_b32 v4, 3, v0\nv_and_b32 v5, 7, v0\nv_and_b32 v6, 2, v4\nv_xor_b32 v5, v5, v6\nv_lshlrev_b32 v5, 4, v5\nv_xor_b32 v6, 64, v5")
    a("s_cmp_eq_u32 s3, 8\ns_cbranch_scc1 L_qaux")
    a.label("L_common2")
    a("s_bfe_u32 s36, s28, 0x20003")
    for p, P in enumerate(tab):
        st = 0; ent = []
        for ro, ix, r in P:
            ent.append(st | r << 6 | ro << 10 | ix << 12); st += r
        w = pack(ent, 16)
        if p: a("s_cmp_eq_u32 s36, %d" % p)
        for k in range(4):
            v = (w >> (32 * k)) & 0xffffffff
            a(("s_mov_b32 s%d, 0x%x" % (60 + k, v)) if p == 0 else ("s_cselect_b32 s%d, 0x%x, s%d" % (60 + k, v, 60 + k)))
    a("s_bitcmp1_b32 s28, 2\ns_cselect_b64 s[60:61], s[62:63], s[60:61]\ns_and_b32 s34, s28, 3\ns_lshl_b32 s34, s34, 4\ns_lshr_b64 s[60:61], s[60:61], s34")
    a("s_and_b32 s38, s60, 63\ns_bfe_u32 s39, s60, 0x40006\ns_bfe_u32 s31, s60, 0x2000a\ns_bfe_u32 s35, s60, 0x4000c")
    a("s_lshr_b32 s37, s28, 5\ns_mul_i32 s36, s37, 9\ns_add_u32 s32, s36, s35\ns_add_u32 s33, s32, 64")
    a("s_cmp_lg_u32 s31, %d\ns_cbranch_scc1 L_r1\ns_lshr_b32 s32, s28, 3\ns_lshl_b32 s32, s32, 1\ns_add_u32 s32, s32, s35\ns_mov_b32 s33, s32" % RO)
    a.label("L_r1")
    a("s_cmp_lg_u32 s31, %d\ns_cbranch_scc1 L_roled" % RH)
    a("s_sub_u32 s34, s35, s37\ns_add_u32 s34, s34, 3\ns_and_b32 s34, s34, 7\ns_cmp_eq_u32 s35, 8\ns_cselect_b32 s34, 8, s34\ns_add_u32 s33, s36, s34")
    a.label("L_roled")
    a("v_bfe_u32 v7, v0, 2, 2\nv_lshl_add_u32 v8, v3, 3, v7\nv_lshlrev_b32 v8, 7, v8\nv_and_b32 v9, 3, v0\nv_lshl_add_u32 v8, v9, 3, v8")
    a("v_and_b32 v9, 1, v3\nv_lshlrev_b32 v9, 1, v9\nv_lshrrev_b32 v7, 1, v7\nv_or_b32 v9, v9, v7\nv_lshlrev_b32 v9, 5, v9")
    for T in range(4):
        a("v_xor_b32 v%d, %d, v9\nv_add_u32 v%d, v%d, v8" % (12 + T, T * 32, 12 + T, 12 + T))
    a("v_lshrrev_b32 v10, 2, v0\nv_xor_b32 v10, v10, v0\nv_and_b32 v10, 1, v10")
    a("s_cmp_eq_u32 s3, 8\ns_cbranch_scc1 L_qaux2")
    a("s_cmp_eq_u32 s3, 9\ns_cbranch_scc1 L_haux")
    a("s_cmp_eq_u32 s3, 10\ns_cbranch_scc1 L_loader")

    DR, KR, VR = 64, 68, 108
    if pf:
        a("s_cmp_lg_u32 s3, 7\ns_cbranch_scc1 L_nopf")
        a("s_getpc_b64 s[60:61]")
        a.label("L_pfbase")
        a("v_lshlrev_b32 v2, 7, v0\nv_min_u32 v2, L_end-L_pfbase, v2\nglobal_load_dword v148, v2, s[60:61]\nv_add_u32 v2, 0x2000, v2\nv_min_u32 v2, L_end-L_pfbase, v2\nglobal_load_dword v149, v2, s[60:61]")
        a.label("L_nopf")
    a("v_bfe_u32 v16, v0, 2, 2\nv_lshlrev_b32 v16, 8, v16\nv_lshl_add_u32 v16, v3, 6, v16\nv_and_b32 v17, 3, v0\nv_lshl_add_u32 v16, v17, 4, v16")
    a("v_lshlrev_b32 v17, 4, v0")
    a("s_lshr_b32 s34, s30, 3\ns_lshl_b32 s34, s34, 4\ns_add_u32 s34, s34, s29\ns_lshl_b32 s34, s34, 21\ns_add_u32 s34, s34, %d" % (6144 * 256))
    a("s_lshl_b32 s38, s38, 13\ns_add_u32 s34, s34, s38\ns_mul_i32 s38, s3, s39\ns_lshl_b32 s38, s38, 10\ns_add_u32 s36, s34, s38")
    SO = 46
    a("s_add_u32 s37, s28, s3\ns_and_b32 s37, s37, 7\ns_sub_u32 s34, s37, s39\ns_cselect_b32 s37, s37, s34")
    for t in range(RMAX):
        a("s_lshl_b32 s34, s37, 10\ns_add_u32 s%d, s34, s36" % (SO + t))
        if t < RMAX - 1: a("s_add_u32 s37, s37, 1\ns_cmp_eq_u32 s37, s39\ns_cselect_b32 s37, 0, s37")
    a("s_waitcnt lgkmcnt(0)")
    a("s_load_dword s56, s[26:27], 0")
    srd(40, 6, 64 << 20); srd(4, 8, 64 << 20)
    a("s_setprio 1")
    for r in list(range(KR, KR + 4 * NABS)) + list(range(VR, VR + 4 * NABS)): a("v_mov_b32 v%d, 0" % r)
    spin(FS0, sleep=0)
    stamp(1)
    assert vd and vd <= min(RSET)
    for t in range(2 * RMAX):
        d = kd if t < RMAX + 1 else vd
        if t % RMAX == 0:
            for R_ in RSET: a("s_cmp_eq_u32 s39, %d\ns_cbranch_scc1 L_kv%d" % (R_, t + RMAX - R_))
        if RMAX - t % RMAX in RSET: a.label("L_kv%d" % t)
        if t >= d: a("s_waitcnt vmcnt(%d)" % (d - 1))
        if t < RMAX:
            a("buffer_load_dwordx4 %s, v16, s[40:43], s%d offen%s" % (vr(KR + 4 * t, 4), SO + t, nt))
        else:
            a("buffer_load_dwordx4 %s, v17, s[4:7], s%d offen%s" % (vr(VR + 4 * (t - RMAX), 4), SO + t - RMAX, nt))
    addflag(CI)
    stamp(2)
    a("v_bfe_u32 v18, v0, 3, 1\nv_lshlrev_b32 v18, 8, v18\nv_lshl_add_u32 v18, v3, 6, v18\nv_and_b32 v19, 3, v0\nv_lshl_add_u32 v18, v19, 4, v18")
    a("v_and_b32 v19, 1, v0\nv_lshlrev_b32 v19, 4, v19\nv_mov_b32 v24, 0xffff\nv_lshlrev_b32 v24, v19, v24\nv_bfe_u32 v19, v0, 1, 2")
    for i in range(4):
        a("v_cmp_eq_u32 vcc, %d, v19\ns_nop 1\nv_cndmask_b32 v%d, 0, v24, vcc" % (i, 20 + i))
    a("s_mov_b32 s38, 0x%x" % f32bits(CSC))
    for t in range(NABS): a("s_cmp_lt_u32 s39, %d\ns_cselect_b32 s%d, 0xff800000, 0" % (RMAX - t, 10 + t))
    tag_setup()
    spin(FQ)
    stamp(3)
    a("ds_read_b128 v[24:27], v18 offset:%d\ns_waitcnt lgkmcnt(0)" % QV)
    for t in range(RMAX):
        a("v_mfma_f32_16x16x32_bf16 %s, %s, v[24:27], 0" % (vr(DR + 4 * t, 4), vr(KR + 4 * t, 4)))
    S, P = 32, 42
    for t in range(RMAX): a("v_mov_b32_dpp v%d, v%d quad_perm:[0,0,0,0] row_mask:0xf bank_mask:0xf" % (S + t, DR + 4 * t))
    for i in range(1, 4):
        for t in range(RMAX):
            a("v_add_f32_dpp v%d, v%d, v%d quad_perm:[%d,%d,%d,%d] row_mask:0xf bank_mask:0xf" % (S + t, DR + 4 * t + i, S + t, i, i, i, i))
    for t in range(NABS): a("v_add_f32 v%d, s%d, v%d" % (S + t, 10 + t, S + t))
    a("v_max3_f32 v28, v32, v33, v34\nv_max3_f32 v29, v35, v36, v37\nv_max3_f32 v28, v28, v38, v39\nv_max3_f32 v29, v29, v40, v41\nv_max_f32 v28, v28, v29")
    xor_reduce("v_max_f32", ["v28"], ["v30"])
    a("v_mul_f32 v28, s38, v28")
    for t in range(RMAX): a("v_fma_f32 v%d, v%d, s38, -v28" % (S + t, S + t))
    for t in range(RMAX): a("v_exp_f32 v%d, v%d" % (S + t, S + t))
    a("s_nop 0")
    for t in range(RMAX): a("v_cvt_pk_bf16_f32 v%d, v%d, v%d" % (P + t, S + t, S + t))
    a("v_add_f32 v29, v32, v33\nv_add_f32 v30, v34, v35\nv_add_f32 v31, v36, v37\nv_add_f32 v32, v38, v39\nv_add_f32 v33, v40, v41")
    a("v_add_f32 v29, v29, v30\nv_add_f32 v31, v31, v32\nv_add_f32 v29, v29, v33\nv_add_f32 v29, v29, v31")
    xor_reduce("v_add_f32", ["v29"], ["v30"])
    a("s_lshl_b32 s34, s3, 10\nv_lshl_add_u32 v30, v0, 4, s34\ns_lshl_b32 s34, s3, 9\nv_lshl_add_u32 v31, v0, 3, s34")
    a("ds_write_b64 v31, v[28:29] offset:%d" % ML)
    stamp(4)
    for i in range(4): a("v_and_b32 v%d, v%d, v%d" % (DR + i, P, 20 + i))
    for t in range(RMAX):
        if t + 1 < RMAX:
            for i in range(4): a("v_and_b32 v%d, v%d, v%d" % (DR + 4 * (t + 1) + i, P + t + 1, 20 + i))
        else:
            a("v_mov_b32 v2, 1\ns_nop 0")
        if RMAX - 1 - t < vd: a("s_waitcnt vmcnt(%d)" % (RMAX - 1 - t))
        a("v_mfma_f32_16x16x32_bf16 v[24:27], %s, %s, %s" % (vr(VR + 4 * t, 4), vr(DR + 4 * t, 4), "0" if t == 0 else "v[24:27]"))
    a("v_bfe_u32 v34, v0, 3, 1\nv_lshlrev_b32 v32, 13, v34\nv_lshrrev_b32 v35, 1, v3\nv_lshl_add_u32 v32, v35, 12, v32\nv_and_b32 v36, 1, v3\nv_lshl_add_u32 v32, v36, 7, v32\nv_and_b32 v36, 7, v0\nv_lshl_add_u32 v32, v36, 4, v32")
    a("ds_write_b128 v30, v[24:27] offset:%d" % ACC)
    a("s_mov_b64 exec, 1\nds_add_rtn_u32 v2, v1, v2 offset:%d\ns_mov_b64 exec, -1" % CA)
    a("v_lshlrev_b32 v30, 4, v0\nv_lshlrev_b32 v31, 3, v0\nv_lshlrev_b32 v33, 7, v34")
    a("s_lshl_b32 s34, s29, 14\ns_lshl_b32 s35, s30, 8\ns_add_u32 s34, s34, s35")
    wsbase(60, "s34", OIN)
    a("s_lshl_b32 s34, s29, 8\ns_lshl_b32 s35, s30, 3\ns_add_u32 s34, s34, s35")
    wsbase(62, "s34", MLIN)
    a("s_waitcnt lgkmcnt(0)\nv_readfirstlane_b32 s34, v2")
    stamp(5)
    a("s_cmp_lg_u32 s34, 7\ns_cbranch_scc1 L_att_done")
    for w in range(8): a("ds_read_b64 %s, v31 offset:%d" % (vr(40 + 2 * w, 2), ML + w * 512))
    for w in range(7): a("ds_read_b128 %s, v30 offset:%d" % (vr(KR + 4 * w, 4), ACC + w * 1024))
    a("s_waitcnt lgkmcnt(7)")
    a("ds_read_b128 %s, v30 offset:%d" % (vr(KR + 28, 4), ACC + 7 * 1024))
    a("v_max3_f32 v28, v40, v42, v44\nv_max3_f32 v28, v28, v46, v48\nv_max3_f32 v28, v28, v50, v52\nv_max_f32 v28, v28, v54\nv_and_b32 v28, s58, v28")
    for w in range(8): a("v_sub_f32 v%d, v%d, v28" % (40 + 2 * w, 40 + 2 * w))
    for w in range(8): a("v_exp_f32 v%d, v%d" % (40 + 2 * w, 40 + 2 * w))
    a("s_waitcnt lgkmcnt(0)")
    for i in range(4): a("v_mul_f32 v%d, v40, v%d" % (24 + i, KR + i))
    for w in range(1, 8):
        for i in range(4): a("v_fmac_f32 v%d, v%d, v%d" % (24 + i, 40 + 2 * w, KR + 4 * w + i))
    for i in range(4): a("v_bfi_b32 v%d, s58, v%d, v11" % (24 + i, 24 + i))
    publish("v32", "v30", "v[24:27]", "s[60:61]")
    a("v_mul_f32 v29, v40, v41")
    for w in range(1, 8): a("v_fmac_f32 v29, v%d, v%d" % (40 + 2 * w, 41 + 2 * w))
    a("v_bfi_b32 v36, s58, v28, v11\nv_bfi_b32 v37, s58, v29, v11")
    a("s_mov_b64 exec, 0x101")
    publish("v33", "v31", "v[36:37]", "s[62:63]", 2)
    a("s_mov_b64 exec, -1")
    a.label("L_att_done")
    stamp(6)
    a("s_cmp_ge_u32 s31, 2\ns_cbranch_scc1 L_rpath")
    a("s_lshl_b32 s34, s3, 2\nv_mov_b32 v16, s34")
    spin(FW, vzero="v16")
    a("s_mov_b32 s39, s3")
    a.label("L_frag")
    stamp(7)
    BF = 64
    a("s_lshl_b32 s34, s39, 13\ns_add_u32 s34, s34, %d" % WB)
    for T in range(4): a("v_add_u32 v%d, s34, v%d" % (16 + T, 12 + T))
    cnt = 0
    for tau in range(2):
        for T in range(4):
            for eta in range(2):
                if cnt == 14: a("s_waitcnt lgkmcnt(6)"); cnt = 6
                a("ds_read_b64_tr_b16 %s, v%d offset:%d" % (vr(BF + tau * 16 + T * 4 + eta * 2, 2), 16 + T, tau * 4096 + eta * 512)); cnt += 1
    a("v_bfe_u32 v20, v0, 2, 3\ns_movk_i32 s34, %d\nv_and_b32 v21, 3, v0\nv_lshlrev_b32 v21, 4, v21\nv_mad_u32_u24 v20, v20, s34, v21" % RSTRIDE)
    a("v_lshlrev_b32 v21, 7, v10\nv_lshl_add_u32 v21, v3, 4, v21\nv_and_b32 v22, 1, v3\nv_lshlrev_b32 v22, 2, v22")
    a("s_mul_i32 s34, s39, %d\ns_lshl_b32 s35, s33, 6\ns_add_u32 s34, s34, s35" % (8 * RSTRIDE))
    wsbase(60, "s34", RIN)
    spin(FA, val=2, sleep=psleep)
    stamp(8)
    a("ds_read_b128 v[24:27], v21 offset:%d\nds_read_b128 v[28:31], v21 offset:%d\nds_read_b32 v23, v22 offset:%d" % (AV, AV + 64, GS))
    a("s_waitcnt lgkmcnt(2)")
    for T in range(4): a("v_mfma_f32_16x16x32_bf16 %s, v[24:27], %s, 0" % (vr(32 + 4 * T, 4), vr(BF + 4 * T, 4)))
    a("s_waitcnt lgkmcnt(1)")
    for T in range(4): a("v_mfma_f32_16x16x32_bf16 %s, v[28:31], %s, %s" % (vr(32 + 4 * T, 4), vr(BF + 16 + 4 * T, 4), vr(32 + 4 * T, 4)))
    a("s_waitcnt lgkmcnt(0)\ns_nop 3")
    for T in range(4): a("v_mul_f32 v%d, v23, v%d" % (24 + T, 32 + 4 * T) + ("\ns_nop 0" if T < 3 else ""))
    for T in range(4): a("v_bfi_b32 v%d, s58, v%d, v11" % (24 + T, 24 + T))
    a("s_mov_b32 exec_hi, 0\nglobal_store_dwordx4 v20, v[24:27], s[60:61] sc1\ns_mov_b64 exec, -1")
    stamp(9)
    a("s_branch L_fin")

    a.label("L_loader")
    a("s_cmp_ge_u32 s31, 2\ns_cbranch_scc1 L_fin")
    a("s_movk_i32 s34, 1152\nv_mad_u32_u24 v16, v4, s34, v5\nv_mad_u32_u24 v17, v4, s34, v6\nv_mov_b32 v18, 1")
    a("s_mul_i32 s36, s32, %d\ns_mov_b32 m0, %d" % (64 * 1152, WB))
    a("s_waitcnt lgkmcnt(0)\ns_load_dword s56, s[26:27], 0")
    a("s_cmp_eq_u32 s31, 0\ns_cselect_b32 s48, s12, s18\ns_cselect_b32 s49, s13, s19\ns_mov_b32 s50, 0x%x\ns_mov_b32 s51, 0x20000" % (4608 * 576 * 2))
    a("s_cselect_b32 s50, 0x%x, s50" % (4096 * 576 * 2))
    tag_setup()
    spin(CI, val=8, sleep=2)
    stamp(1)
    n = 8; tot = 72; flagged = 0
    for k in range(tot):
        s_, rg = divmod(k, n)
        if k >= ldepth:
            a("s_waitcnt vmcnt(%d)" % (ldepth - 1))
            done = k - ldepth + 1
            while (flagged + 1) * n <= done:
                a("ds_write_b32 v1, v18 offset:%d" % (FW + 4 * flagged)); flagged += 1
        a("buffer_load_dwordx4 %s, s[48:51], s36 offen%s lds" % ("v16" if rg % 2 == 0 else "v17", nt))
        if k < tot - 1:
            a("s_add_u32 m0, m0, 1024")
            if rg < n - 1: a("s_add_u32 s36, s36, %d" % (8 * 1152))
            else: a("s_sub_u32 s36, s36, %d" % ((n - 1) * 8 * 1152 - 128))
    stamp(2)
    a("s_setprio 2")
    while flagged < 8:
        a("s_waitcnt vmcnt(%d)\nds_write_b32 v1, v18 offset:%d" % (tot - (flagged + 1) * n, FW + 4 * flagged)); flagged += 1
    a("s_mov_b32 s39, 8\ns_waitcnt vmcnt(0)")
    a("s_branch L_frag")

    a.label("L_rpath")
    a("s_cmp_lg_u32 s31, %d\ns_cbranch_scc1 L_fin" % RH)
    a("s_mul_i32 s34, s32, %d\ns_lshl_b32 s35, s3, 10\ns_add_u32 s34, s34, s35" % RSTRIDE)
    wsbase(60, "s34", RIN)
    a("s_cmp_eq_u32 s3, 8\ns_cselect_b32 s35, 31, 63\nv_and_b32 v16, s35, v0\nv_lshlrev_b32 v16, 4, v16")
    a("v_and_b32 v17, 3, v0\nv_lshlrev_b32 v17, 4, v17\ns_lshl_b32 s34, s3, 6\nv_add_u32 v19, s34, v17")
    spin(FH, sleep=2)
    stamp(7)
    poll([(32, "global_load_dwordx4 v[32:35], v16, s[60:61] sc1")], "v18", "R", rsleep)
    stamp(8)
    a("s_cmp_lg_u32 s3, 8\ns_cbranch_scc1 L_rfull")
    a("s_mov_b32 exec_lo, 0\nv_mov_b32 v32, 0\nv_mov_b32 v33, 0\nv_mov_b32 v34, 0\nv_mov_b32 v35, 0\ns_mov_b64 exec, -1\ns_nop 0")
    a.label("L_rfull")
    for sh in (4, 8):
        for i in range(4): a("v_add_f32_dpp v%d, v%d, v%d row_ror:%d row_mask:0xf bank_mask:0xf" % (32 + i, 32 + i, 32 + i, sh))
    xor_reduce("v_add_f32", ["v32", "v33", "v34", "v35"], ["v36", "v37", "v38", "v39"])
    a("v_mov_b32 v2, 1")
    a("ds_write_b128 v19, v[32:35] offset:%d" % WQ)
    a("s_mov_b64 exec, 1\nds_add_rtn_u32 v2, v1, v2 offset:%d\ns_mov_b64 exec, -1" % CR)
    a("s_lshr_b32 s34, s32, 3\ns_lshl_b32 s34, s34, 7\ns_bfe_u32 s35, s32, 0x10002\ns_mul_i32 s35, s35, 1152\ns_add_u32 s34, s34, s35\ns_and_b32 s35, s32, 3\ns_lshl_b32 s35, s35, 3\ns_add_u32 s34, s34, s35")
    a("v_lshrrev_b32 v19, 3, v17\nv_add_u32 v19, s34, v19")
    a("s_waitcnt lgkmcnt(0)\nv_readfirstlane_b32 s34, v2")
    a("s_cmp_lg_u32 s34, 8\ns_cbranch_scc1 L_fin")
    for w in range(9): a("ds_read_b128 %s, v17 offset:%d" % (vr(64 + 4 * w, 4), WQ + w * 64))
    for w in range(1, 9):
        a("s_waitcnt lgkmcnt(%d)" % (8 - w))
        a("v_pk_add_f32 v[64:65], v[64:65], %s\nv_pk_add_f32 v[66:67], v[66:67], %s" % (vr(64 + 4 * w, 2), vr(66 + 4 * w, 2)))
    a("v_cvt_pk_bf16_f32 v32, v64, v65\nv_cvt_pk_bf16_f32 v33, v66, v67")
    a("s_mov_b64 exec, 0xf")
    a("global_store_short v19, v32, s[22:23]\nglobal_store_short_d16_hi v19, v32, s[22:23] offset:32\nglobal_store_short v19, v33, s[22:23] offset:64\nglobal_store_short_d16_hi v19, v33, s[22:23] offset:96")
    a("s_cmp_lg_u32 s32, 0\ns_cbranch_scc1 L_rdone")
    a("s_add_u32 s34, s56, 1\nv_mov_b32 v2, s34\ns_mov_b64 exec, 1\nglobal_store_dword v1, v2, s[26:27]")
    a.label("L_rdone")
    a("s_mov_b64 exec, -1")
    stamp(9)
    a("s_branch L_fin")

    a.label("L_qaux")
    a("s_setprio 3")
    a("v_lshl_add_u32 v17, v4, 13, v5\nv_lshl_add_u32 v18, v4, 13, v6\nv_lshlrev_b32 v16, 4, v0")
    a("s_and_b32 s34, s28, 3\ns_mul_i32 s36, s34, %d\ns_lshr_b32 s35, s28, 2\ns_lshl_b32 s35, s35, 7\ns_add_u32 s36, s36, s35" % (144 * 8192))
    a("s_mov_b32 m0, %d\ns_waitcnt lgkmcnt(0)" % XS)
    srd(40, 4, 2304)
    for k in range(3): a("buffer_load_dwordx4 v16, s[40:43], 0 offen offset:%d lds" % (k * 1024))
    srd(48, 10, 576 * 4096 * 2)
    a("s_mov_b32 m0, %d\ns_load_dword s56, s[26:27], 0" % WQ)
    for rg in range(18):
        a("buffer_load_dwordx4 %s, s[48:51], s36 offen%s lds" % ("v17" if rg % 2 == 0 else "v18", nt))
        if rg < 17: a("s_add_u32 m0, m0, 1024\ns_add_u32 s36, s36, %d" % (8 * 8192))
    setflag(FS0)
    a("v_mov_b32 v20, 0\nv_mov_b32 v21, 0\nv_mov_b32 v22, 0\nv_mov_b32 v23, 0")
    a("ds_write_b128 v16, v[20:23] offset:%d\nds_write_b128 v16, v[20:23] offset:%d" % (WQ + 144 * 128, WQ + 152 * 128))
    a("s_branch L_common2")
    a.label("L_qaux2")
    stamp(1)
    tag_setup()
    a("v_and_b32 v16, 15, v0\nv_lshlrev_b32 v16, 4, v16\nv_lshl_add_u32 v17, v3, 12, v16")
    a("s_lshl_b32 s34, s29, 13\ns_and_b32 s35, s28, 3\ns_lshl_b32 s35, s35, 10\ns_add_u32 s34, s34, s35\ns_bfe_u32 s35, s28, 0x20002\ns_lshl_b32 s35, s35, 8\ns_add_u32 s34, s34, s35")
    wsbase(60, "s34", QIN)
    a("s_lshl_b32 s34, s29, 13\ns_lshr_b32 s35, s30, 3\ns_lshl_b32 s35, s35, 12\ns_add_u32 s34, s34, s35")
    wsbase(62, "s34", QIN)
    a("s_and_b32 s35, s28, 3\ns_mul_i32 s35, s35, 288")
    gemv1(5, WQ, "s35", 32, 18, 18)
    setflag(FX)
    stamp(2)
    a("s_nop 3")
    for T in range(4): a("v_bfi_b32 v%d, s58, v%d, v11" % (24 + T, 32 + 4 * T))
    a("s_mov_b32 exec_hi, 0")
    publish("v17", "v18", "v[24:27]", "s[60:61]")
    a("s_mov_b64 exec, -1")
    stamp(3)
    a("v_lshlrev_b32 v16, 4, v0")
    a("v_and_b32 v17, 15, v0\nv_lshlrev_b32 v17, 1, v17\nv_lshl_add_u32 v17, v3, 7, v17")
    poll([(64 + 4 * k, "global_load_dwordx4 %s, v16, s[62:63] offset:%d sc1" % (vr(64 + 4 * k, 4), 1024 * k)) for k in range(4)], "v18", "Q", voffs=(16,))
    for i in range(4): a("v_add_f32 v%d, v%d, v%d\nv_add_f32 v%d, v%d, v%d" % (64 + i, 64 + i, 68 + i, 72 + i, 72 + i, 76 + i))
    for i in range(4): a("v_add_f32 v%d, v%d, v%d" % (64 + i, 64 + i, 72 + i))
    a("v_cvt_pk_bf16_f32 v64, v64, v65\nv_cvt_pk_bf16_f32 v65, v66, v67")
    a("ds_write_b16 v17, v64 offset:%d\nds_write_b16_d16_hi v17, v64 offset:%d\nds_write_b16 v17, v65 offset:%d\nds_write_b16_d16_hi v17, v65 offset:%d" % (QV, QV + 32, QV + 64, QV + 96))
    setflag(FQ)
    stamp(4)
    a("s_cmp_ge_u32 s31, 2\ns_cbranch_scc1 L_rpath")
    a("s_cmp_eq_u32 s31, 0\ns_cbranch_scc1 L_q_o")
    a("s_lshl_b32 s34, s32, 9")
    wsbase(60, "s34", HIN)
    a("v_and_b32 v16, 31, v0\nv_lshlrev_b32 v16, 4, v16")
    spin(CI, val=8, sleep=2)
    stamp(5)
    poll([(64, "global_load_dwordx4 v[64:67], v16, s[60:61] sc1")], "v18", "H", sleep=2, voffs=(16,))
    stamp(6)
    a("v_cvt_pk_bf16_f32 v64, v64, v65\nv_cvt_pk_bf16_f32 v65, v66, v67\nv_mov_b32 v2, 1\ns_mov_b32 exec_hi, 0")
    a("ds_write_b16 v17, v64 offset:%d\nds_write_b16_d16_hi v17, v64 offset:%d\nds_write_b16 v17, v65 offset:%d\nds_write_b16_d16_hi v17, v65 offset:%d" % (AV, AV + 32, AV + 64, AV + 96))
    a("s_mov_b64 exec, 1\nds_add_u32 v1, v2 offset:%d\ns_mov_b64 exec, -1" % FA)
    stamp(7)
    a("s_branch L_fin")
    a.label("L_q_o")
    a("s_lshl_b32 s34, s32, 12")
    wsbase(60, "s34", OIN)
    a("s_lshr_b32 s34, s32, 1\ns_lshl_b32 s34, s34, 7")
    wsbase(62, "s34", MLIN)
    a("v_lshrrev_b32 v18, 5, v0\nv_and_b32 v19, 1, v3\nv_lshlrev_b32 v16, 11, v18\nv_lshl_add_u32 v16, v19, 8, v16\nv_and_b32 v20, 15, v0\nv_lshl_add_u32 v16, v20, 4, v16")
    a("v_lshlrev_b32 v17, 6, v18\nv_lshl_add_u32 v17, v19, 3, v17")
    a("v_lshlrev_b32 v21, 7, v18\nv_bfe_u32 v19, v0, 3, 1\nv_lshl_add_u32 v21, v19, 6, v21\nv_and_b32 v19, 7, v0\nv_lshl_add_u32 v21, v19, 1, v21")
    spin(CA, val=8, sleep=2)
    stamp(5)
    OD, OM = 96, 112
    poll([(OM + 4 * k, "global_load_dwordx2 %s, v17, s[62:63] offset:%d sc1" % (vr(OM + 4 * k, 2), 16 * k), 2) for k in range(4)] +
         [(OD + 4 * k, "global_load_dwordx4 %s, v16, s[60:61] offset:%d sc1" % (vr(OD + 4 * k, 4), 512 * k)) for k in range(4)], "v18", "O", voffs=(16, 17))
    stamp(6)
    a("v_max3_f32 v24, v%d, v%d, v%d\nv_max_f32 v24, v24, v%d" % (OM, OM + 4, OM + 8, OM + 12))
    a("v_mov_b32 v25, v24\ns_nop 1\nv_permlane16_swap_b32 v24, v25\nv_max_f32 v24, v24, v25")
    for k in range(4): a("v_sub_f32 v%d, v%d, v24" % (OM + 4 * k, OM + 4 * k))
    for k in range(4): a("v_exp_f32 v%d, v%d" % (OM + 4 * k, OM + 4 * k))
    a("s_nop 0\nv_mul_f32 v28, v%d, v%d" % (OM, OM + 1))
    for k in range(1, 4): a("v_fmac_f32 v28, v%d, v%d" % (OM + 4 * k, OM + 4 * k + 1))
    for i in range(4): a("v_mul_f32 v%d, v%d, v%d" % (24 + i, OM, OD + i))
    for k in range(1, 4):
        for i in range(4): a("v_fmac_f32 v%d, v%d, v%d" % (24 + i, OM + 4 * k, OD + 4 * k + i))
    for i in (4, 0, 1, 2, 3): a("v_mov_b32 v%d, v%d" % (32 + i, 24 + i))
    for i in (4, 0, 1, 2, 3): a("v_permlane16_swap_b32 v%d, v%d" % (24 + i, 32 + i))
    a("v_add_f32 v28, v28, v36\nv_rcp_f32 v28, v28")
    for i in range(4): a("v_add_f32 v%d, v%d, v%d" % (24 + i, 24 + i, 32 + i))
    for i in range(4): a("v_mul_f32 v%d, v%d, v28" % (24 + i, 24 + i))
    a("v_cvt_pk_bf16_f32 v24, v24, v25\nv_cvt_pk_bf16_f32 v25, v26, v27\nv_mov_b32 v2, 1")
    a("ds_write_b16 v21, v24 offset:%d\nds_write_b16_d16_hi v21, v24 offset:%d\nds_write_b16 v21, v25 offset:%d\nds_write_b16_d16_hi v21, v25 offset:%d" % (AV, AV + 16, AV + 32, AV + 48))
    a("s_mov_b64 exec, 1\nds_add_u32 v1, v2 offset:%d\ns_mov_b64 exec, -1" % FA)
    stamp(7)
    a("s_branch L_fin")

    a.label("L_haux")
    a("s_cmp_eq_u32 s31, %d\ns_cbranch_scc1 L_fin" % RX)
    a("s_cmp_eq_u32 s31, %d\ns_cbranch_scc1 L_h" % RH)
    a("v_lshlrev_b32 v16, 4, v0\ns_mov_b32 m0, %d\ns_waitcnt lgkmcnt(0)" % GW)
    srd(44, 20, 1152)
    for k in range(2): a("buffer_load_dwordx4 v16, s[44:47], 0 offen offset:%d lds" % (k * 1024))
    a("v_and_b32 v16, 31, v0\nv_lshlrev_b32 v16, 2, v16\nv_lshrrev_b32 v17, 5, v0\ns_movk_i32 s34, 1152\nv_mad_u32_u24 v17, v17, s34, v16")
    spin(FX, sleep=2)
    a("s_waitcnt vmcnt(0)")
    for k in range(9):
        a("ds_read_b32 v%d, v17 offset:%d" % (64 + k, XS + 128 * k))
        if k == 6: a("s_waitcnt lgkmcnt(4)")
    for k in range(9):
        a("ds_read_b32 v%d, v16 offset:%d" % (76 + k, GW + 128 * k))
        if k in (2, 6): a("s_waitcnt lgkmcnt(6)")
    a("s_mov_b32 s35, 0xffff0000\nv_mov_b32 v18, 0\ns_waitcnt lgkmcnt(0)")
    for k in range(9):
        x, w = 64 + k, 76 + k
        a("v_lshlrev_b32 v20, 16, v%d\nv_and_b32 v21, s35, v%d\nv_lshlrev_b32 v22, 16, v%d\nv_and_b32 v23, s35, v%d" % (x, x, w, w))
        a("v_mul_f32 v20, v20, v22\nv_mul_f32 v21, v21, v23\nv_cvt_pk_bf16_f32 v20, v20, v21\nv_lshlrev_b32 v21, 16, v20\nv_and_b32 v20, s35, v20\nv_add_f32 v18, v18, v21\nv_add_f32 v18, v18, v20")
    a("s_nop 1")
    for sh in (1, 2, 4, 8):
        a("v_add_f32_dpp v18, v18, v18 row_ror:%d row_mask:0xf bank_mask:0xf\ns_nop 1" % sh)
    a("v_mov_b32 v19, v18\ns_nop 1\nv_permlane16_swap_b32 v18, v19\nv_add_f32 v18, v18, v19")
    a("v_cvt_pk_bf16_f32 v18, v18, v18\nv_and_b32 v18, s35, v18\nv_mul_f32 v18, 0x%x, v18\nv_exp_f32 v18, v18\ns_nop 0\nv_add_f32 v18, 1.0, v18\nv_rcp_f32 v18, v18\ns_nop 0" % f32bits(-math.log2(math.e)))
    a("v_cvt_pk_bf16_f32 v18, v18, v18\nv_and_b32 v18, s35, v18\nv_sub_f32 v19, 1.0, v18\nv_cvt_pk_bf16_f32 v19, v19, v19\nv_and_b32 v19, s35, v19")
    a("v_lshrrev_b32 v17, 5, v0\nv_lshlrev_b32 v17, 2, v17")
    a("s_cmp_eq_u32 s31, 0\ns_cselect_b64 vcc, -1, 0\nv_cndmask_b32 v18, v19, v18, vcc")
    a("ds_write_b32 v17, v18 offset:%d" % GS)
    addflag(FA)
    a("s_branch L_fin")
    a.label("L_h")
    a("s_movk_i32 s34, 9216\nv_mad_u32_u24 v50, v4, s34, v5\nv_mad_u32_u24 v51, v4, s34, v6")
    a("s_lshl_b32 s36, s33, 7\ns_waitcnt lgkmcnt(0)\ns_load_dword s56, s[26:27], 0")
    srd(52, 16, 576 * 4608 * 2)
    a("s_lshl_b32 s34, s33, 9")
    wsbase(60, "s34", HIN)
    a("s_setprio 2\ns_mov_b32 m0, %d" % WB)
    tag_setup()
    spin(FX, sleep=4)
    spin(CI, val=8, sleep=2)
    stamp(1)
    def w1_issue(step):
        for r in range(4):
            if step or r: a("s_add_u32 m0, m0, 1024\ns_add_u32 s36, s36, %d" % (8 * 9216))
            a("buffer_load_dwordx4 %s, s[52:55], s36 offen%s lds" % ("v50" if r % 2 == 0 else "v51", nt))
    for st_ in range(hahead): w1_issue(st_)
    def dma(tau):
        nx = tau + hahead
        if nx < 18:
            w1_issue(nx); return 4
        return 0
    gemv1(18, WB, None, 32, 4 * hahead, 72, dma=dma)
    stamp(2)
    a("v_and_b32 v17, 31, v0\nv_lshlrev_b32 v17, 4, v17\ns_nop 3")
    for T in range(4): a("v_max_f32 v%d, 0, v%d" % (24 + T, 32 + 4 * T))
    for T in range(4): a("v_bfi_b32 v%d, s58, v%d, v11" % (24 + T, 24 + T))
    a("s_mov_b32 exec_hi, 0")
    publish("v17", "v18", "v[24:27]", "s[60:61]")
    a("s_mov_b64 exec, -1")
    setflag(FH)
    stamp(3)

    a.label("L_fin")
    if stamps:
        stamp(NST - 1)
        a("s_mul_i32 s34, s2, %d\ns_add_u32 s34, s34, s3\ns_lshl_b32 s34, s34, 7" % NW)
        wsbase(60, "s34", 0x8000000)
        a("s_mov_b64 exec, 1")
        for k in range(NST):
            a("v_mov_b32 v12, s%d\nv_mov_b32 v13, s%d\nglobal_store_dwordx2 v1, v[12:13], s[60:61] offset:%d\ns_nop 1" % (64 + 2 * k, 65 + 2 * k, 8 * k))
        for k in range(4):
            a("v_mov_b32 v12, s%d\nv_mov_b32 v13, 0\nglobal_store_dwordx2 v1, v[12:13], s[60:61] offset:%d\ns_nop 1" % (90 + k, 8 * (NST + k)))
    a.label("L_end")
    a("s_endpgm")
    return wrap(a.text(), 256, NW * 64, LDS_TOTAL, 152)

if __name__ == "__main__":
    print(tables())
    open("v6.s", "w").write(gen())
    open("v6s.s", "w").write(gen(stamps=True))
    open("v6s_b.s", "w").write(gen(stamps=True, vd=3))
    open("v6s_c.s", "w").write(gen(stamps=True, ldepth=24, hahead=7))
    open("v6s_d.s", "w").write(gen(stamps=True, ldepth=40, hahead=10))
```

```python
import sys, math, struct
from asmlib import *

FQ, FA, FW, CA, CR, FS0, FH, CI, FX = 0, 4, 8, 64, 68, 72, 76, 80, 88
QV, AV, GS, XS, GW = 256, 768, 1024, 2048, 5120
ACC, ML, WQ, WB, LDS_TOTAL = 8192, 16384, 20480, 40960, 114688
QIN, HIN, OIN, MLIN, RIN = 0x1000, 0x40000, 0x80000, 0xC8000, 0x100000
FASTOFF = 0x200000
NPROD = 136
RSTRIDE = NPROD * 64
CSC = math.log2(math.e) / math.sqrt(128.0)
def f32bits(x): return struct.unpack("<I", struct.pack("<f", x))[0]
NW, NST, RMAX = 11, 12, 10
def pack(vals, bits): return sum(v << (bits * k) for k, v in enumerate(vals))
RO, RF, RH, RX = 0, 1, 2, 3
def tables(g=9, hA=(4, 4, 4, 4), hB=(6, 6, 6), hC=(4, 5), gx=None):
    T = [
        [(RO, 0, g), (RO, 1, g), (RF, 0, g), (RF, 1, g), (RH, 0, hA[0]), (RH, 8, hA[1]), (RX, 0, 0), (RX, 0, 0)],
        [(RO, 0, g), (RO, 1, g), (RF, 2, g), (RF, 3, g), (RH, 1, hA[2]), (RH, 2, hA[3]), (RX, 0, 0), (RX, 0, 0)],
        [(RO, 0, g), (RO, 1, g), (RF, 4, g), (RF, 5, g), (RH, 5, hB[0]), (RH, 6, hB[1]), (RH, 7, hB[2]), (RX, 0, 0)],
        [(RO, 0, g), (RO, 1, g), (RF, 6, g), (RF, 7, g), (RF, 8, g), (RH, 3, hC[0]), (RH, 4, hC[1]), (RX, 0, 0)],
    ]
    out = []
    for P in T:
        rest = 64 - sum(r for _, _, r in P); nx = sum(1 for e in P if e[0] == RX)
        xs = [rest // nx + (1 if k < rest % nx else 0) for k in range(nx)]
        P = [(ro, ix, r if ro != RX else xs.pop(0)) for ro, ix, r in P]
        assert sum(r for _, _, r in P) == 64 and all(4 <= r <= RMAX for _, _, r in P), P
        out.append(P)
    return out

def gen(nt=" nt", stamps=False, pf=True, rsleep=0, ldepth=32, kd=3, vd=4, look=6, hahead=9, psleep=1, tab=None, ldepthF=None, gf_late=False, vdx=None, kdx=None):
    if ldepthF is None: ldepthF = ldepth
    if tab is None: tab = tables()
    RSET = sorted({r for P in tab for _, _, r in P} - {RMAX})
    NABS = RMAX - min(RSET)
    a = Asm()
    def stamp(k):
        if stamps:
            a("s_memrealtime s[%d:%d]\ns_waitcnt lgkmcnt(0)" % (64 + 2 * k, 65 + 2 * k))
    def srd(d, p, n):
        a("s_mov_b32 s%d, s%d\ns_mov_b32 s%d, s%d\ns_mov_b32 s%d, 0x%x\ns_mov_b32 s%d, 0x20000" % (d, p, d + 1, p + 1, d + 2, n, d + 3))
    def wsbase(d, s_off, const):
        a("s_add_u32 s%d, %s, 0x%x\ns_add_u32 s%d, s26, s%d\ns_addc_u32 s%d, s27, 0" % (d, s_off, const, d, d, d + 1))
    def spin(flag_off, vtmp="v2", vzero="v1", val=None, sleep=1):
        l = a.newlabel("L_spin"); d = a.newlabel("L_spun")
        a.label(l)
        a("ds_read_b32 %s, %s offset:%d\ns_waitcnt lgkmcnt(0)\nv_readfirstlane_b32 s34, %s" % (vtmp, vzero, flag_off, vtmp))
        a("s_cmp_lg_u32 s34, 0" if val is None else "s_cmp_eq_u32 s34, %d" % val)
        a("s_cbranch_scc1 %s" % d)
        if sleep: a("s_sleep %d" % sleep)
        a("s_branch %s" % l)
        a.label(d)
    def setflag(flag_off, vone="v2", vzero="v1"):
        a("v_mov_b32 %s, 1\nds_write_b32 %s, %s offset:%d" % (vone, vzero, vone, flag_off))
    def addflag(flag_off):
        a("v_mov_b32 v2, 1\ns_mov_b64 exec, 1\nds_add_u32 v1, v2 offset:%d\ns_mov_b64 exec, -1" % flag_off)
    def xor_reduce(op, regs, tmps):
        for sw in ("v_permlane16_swap_b32", "v_permlane32_swap_b32"):
            for r, t in zip(regs, tmps): a("v_mov_b32 %s, %s" % (t, r))
            pad = max(0, 2 - (len(regs) - 1))
            if pad: a("s_nop %d" % (pad - 1))
            for r, t in zip(regs, tmps): a("%s %s, %s" % (sw, r, t))
            for r, t in zip(regs, tmps): a("%s %s, %s, %s" % (op, r, r, t))
    def poll(loads, vacc, lbl, sleep=0, voffs=()):
        l = a.newlabel("L_poll" + lbl); d = a.newlabel("L_polled" + lbl)
        a("s_mov_b32 s59, 0")
        for b in voffs: a("v_mov_b32 v%d, v%d" % (b + 40, b))
        a.label(l)
        if voffs:
            a("s_and_b32 s34, s59, 15\ns_cmp_eq_u32 s34, 15\ns_cselect_b32 s34, 0, 0x%x" % FASTOFF)
            for b in voffs: a("v_add_u32 v%d, s34, v%d" % (b, b + 40))
        for ld_ in loads: a(ld_[1])
        a("s_waitcnt vmcnt(0)")
        regs = [ld_[0] + k for ld_ in loads for k in range(ld_[2] if len(ld_) > 2 else 4)]
        for r in regs: a("v_xor_b32 v%d, s57, v%d" % (r, r))
        a("v_or3_b32 %s, v%d, v%d, v%d" % (vacc, regs[0], regs[1], regs[2]))
        rest = regs[3:]
        while rest:
            if len(rest) >= 2:
                a("v_or3_b32 %s, %s, v%d, v%d" % (vacc, vacc, rest[0], rest[1])); rest = rest[2:]
            else:
                a("v_or_b32 %s, %s, v%d" % (vacc, vacc, rest[0])); rest = rest[1:]
        a("v_and_b32 %s, 0xff, %s\nv_cmp_ne_u32 vcc, 0, %s" % (vacc, vacc, vacc))
        a("s_cbranch_vccz %s" % d)
        a("s_add_u32 s59, s59, 1\ns_cmp_lt_u32 s59, 0x10000\ns_cbranch_scc0 %s" % d)
        if sleep: a("s_sleep %d" % sleep)
        a("s_branch %s" % l)
        a.label(d)
        if stamps: a("s_mov_b32 s%d, s59" % (90 + {"Q": 0, "H": 1, "O": 2, "R": 3}[lbl]))
    def publish(voff, vtmp, data, base, width=4):
        a("v_add_u32 %s, 0x%x, %s\nglobal_store_dwordx%d %s, %s, %s" % (vtmp, FASTOFF, voff, width, vtmp, data, base))
        a("global_store_dwordx%d %s, %s, %s sc1" % (width, voff, data, base))
    def tag_setup():
        a("s_waitcnt lgkmcnt(0)\ns_add_u32 s57, s56, 1\ns_and_b32 s57, s57, 0xff\nv_mov_b32 v11, s57")
    def gemv1(nsteps, wbase, s_k0bytes, acc, issued0, total, dma=None):
        a("s_movk_i32 s34, 1152\nv_mul_lo_u32 v16, v10, s34\nv_lshl_add_u32 v16, v3, 4, v16")
        if s_k0bytes: a("v_add_u32 v16, %s, v16" % s_k0bytes)
        for T in range(4): a("v_add_u32 v%d, %d, v%d" % (20 + T, wbase, 12 + T))
        if nsteps > 15:
            for T in range(4): a("v_add_u32 v%d, %d, v%d" % (52 + T, wbase + 15 * 4096, 12 + T))
        units = [(tau, T) for tau in range(nsteps) for T in range(4)]
        AB = [24, 28, 100]
        NB = look + 1
        BB = [64 + 4 * k for k in range(NB)]
        q = []
        vm = [issued0]
        def issue(u):
            tau, T = units[u]
            if T == 0:
                need = min(total, 4 * (tau + 1))
                assert vm[0] >= need, (tau, vm[0], need)
                a("s_waitcnt vmcnt(%d)" % (vm[0] - need))
                a("ds_read_b128 %s, v16 offset:%d" % (vr(AB[tau % 3], 4), XS + tau * 64)); q.append(("A", tau))
            for eta in range(2):
                ar, of = (20 + T, tau * 4096) if tau < 15 else (52 + T, (tau - 15) * 4096)
                a("ds_read_b64_tr_b16 %s, v%d offset:%d" % (vr(BB[u % NB] + 2 * eta, 2), ar, of + eta * 512)); q.append(("B", u))
            assert len(q) <= 15
        for u in range(min(look, len(units))): issue(u)
        for u in range(len(units)):
            tau, T = units[u]
            last = max(k for k, e in enumerate(q) if e == ("B", u))
            a("s_waitcnt lgkmcnt(%d)" % (len(q) - 1 - last))
            del q[:last + 1]
            a("v_mfma_f32_16x16x32_bf16 %s, %s, %s, %s" % (vr(acc + 4 * T, 4), vr(AB[tau % 3], 4), vr(BB[u % NB], 4), "0" if tau == 0 else vr(acc + 4 * T, 4)))
            if T == 1 and dma is not None: vm[0] += dma(tau)
            if u + look < len(units): issue(u + look)

    if stamps:
        a("s_memrealtime s[64:65]")
        for k in range(1, NST): a("s_mov_b64 s[%d:%d], 0" % (64 + 2 * k, 65 + 2 * k))
        a("s_mov_b64 s[90:91], 0\ns_mov_b64 s[92:93], 0")
    a("s_cmp_ge_u32 s2, 256\ns_cbranch_scc1 L_end")
    a("s_load_dwordx16 s[4:19], s[0:1], 0\ns_load_dwordx8 s[20:27], s[0:1], 64")
    a("v_lshrrev_b32 v1, 6, v0\nv_and_b32 v0, 63, v0\ns_and_b32 s28, s2, 7\nv_readfirstlane_b32 s3, v1")
    a("s_lshl_b32 s28, s28, 5\ns_lshr_b32 s29, s2, 3\ns_add_u32 s28, s28, s29")
    a("v_mov_b32 v1, 0\nv_lshrrev_b32 v3, 4, v0")
    a("s_cmp_lg_u32 s3, 0\ns_cbranch_scc1 L_noinit")
    a("v_lshlrev_b32 v2, 2, v0\nds_write_b32 v2, v1\ns_waitcnt lgkmcnt(0)")
    a.label("L_noinit")
    a("s_barrier")
    a("s_lshr_b32 s29, s28, 4\ns_and_b32 s30, s28, 15\ns_mov_b32 s58, 0xffffff00")
    a("v_lshrrev_b32 v4, 3, v0\nv_and_b32 v5, 7, v0\nv_and_b32 v6, 2, v4\nv_xor_b32 v5, v5, v6\nv_lshlrev_b32 v5, 4, v5\nv_xor_b32 v6, 64, v5")
    a("s_cmp_eq_u32 s3, 8\ns_cbranch_scc1 L_qaux")
    a.label("L_common2")
    a("s_bfe_u32 s36, s28, 0x20003")
    for p, P in enumerate(tab):
        st = 0; ent = []
        for ro, ix, r in P:
            ent.append(st | r << 6 | ro << 10 | ix << 12); st += r
        w = pack(ent, 16)
        if p: a("s_cmp_eq_u32 s36, %d" % p)
        for k in range(4):
            v = (w >> (32 * k)) & 0xffffffff
            a(("s_mov_b32 s%d, 0x%x" % (60 + k, v)) if p == 0 else ("s_cselect_b32 s%d, 0x%x, s%d" % (60 + k, v, 60 + k)))
    a("s_bitcmp1_b32 s28, 2\ns_cselect_b64 s[60:61], s[62:63], s[60:61]\ns_and_b32 s34, s28, 3\ns_lshl_b32 s34, s34, 4\ns_lshr_b64 s[60:61], s[60:61], s34")
    a("s_and_b32 s38, s60, 63\ns_bfe_u32 s39, s60, 0x40006\ns_bfe_u32 s31, s60, 0x2000a\ns_bfe_u32 s35, s60, 0x4000c")
    a("s_lshr_b32 s37, s28, 5\ns_mul_i32 s36, s37, 9\ns_add_u32 s32, s36, s35\ns_add_u32 s33, s32, 64")
    a("s_cmp_lg_u32 s31, %d\ns_cbranch_scc1 L_r1\ns_lshr_b32 s32, s28, 3\ns_lshl_b32 s32, s32, 1\ns_add_u32 s32, s32, s35\ns_mov_b32 s33, s32" % RO)
    a.label("L_r1")
    a("s_cmp_lg_u32 s31, %d\ns_cbranch_scc1 L_roled" % RH)
    a("s_sub_u32 s34, s35, s37\ns_add_u32 s34, s34, 3\ns_and_b32 s34, s34, 7\ns_cmp_eq_u32 s35, 8\ns_cselect_b32 s34, 8, s34\ns_add_u32 s33, s36, s34")
    a.label("L_roled")
    a("v_bfe_u32 v7, v0, 2, 2\nv_lshl_add_u32 v8, v3, 3, v7\nv_lshlrev_b32 v8, 7, v8\nv_and_b32 v9, 3, v0\nv_lshl_add_u32 v8, v9, 3, v8")
    a("v_and_b32 v9, 1, v3\nv_lshlrev_b32 v9, 1, v9\nv_lshrrev_b32 v7, 1, v7\nv_or_b32 v9, v9, v7\nv_lshlrev_b32 v9, 5, v9")
    for T in range(4):
        a("v_xor_b32 v%d, %d, v9\nv_add_u32 v%d, v%d, v8" % (12 + T, T * 32, 12 + T, 12 + T))
    a("v_lshrrev_b32 v10, 2, v0\nv_xor_b32 v10, v10, v0\nv_and_b32 v10, 1, v10")
    a("s_cmp_eq_u32 s3, 8\ns_cbranch_scc1 L_qaux2")
    a("s_cmp_eq_u32 s3, 9\ns_cbranch_scc1 L_haux")
    a("s_cmp_eq_u32 s3, 10\ns_cbranch_scc1 L_loader")

    DR, KR, VR = 64, 68, 108
    if pf:
        a("s_cmp_lg_u32 s3, 7\ns_cbranch_scc1 L_nopf")
        a("s_getpc_b64 s[60:61]")
        a.label("L_pfbase")
        a("v_lshlrev_b32 v2, 7, v0\nv_min_u32 v2, L_end-L_pfbase, v2\nglobal_load_dword v148, v2, s[60:61]\nv_add_u32 v2, 0x2000, v2\nv_min_u32 v2, L_end-L_pfbase, v2\nglobal_load_dword v149, v2, s[60:61]")
        a.label("L_nopf")
    a("v_bfe_u32 v16, v0, 2, 2\nv_lshlrev_b32 v16, 8, v16\nv_lshl_add_u32 v16, v3, 6, v16\nv_and_b32 v17, 3, v0\nv_lshl_add_u32 v16, v17, 4, v16")
    a("v_lshlrev_b32 v17, 4, v0")
    a("s_lshr_b32 s34, s30, 3\ns_lshl_b32 s34, s34, 4\ns_add_u32 s34, s34, s29\ns_lshl_b32 s34, s34, 21\ns_add_u32 s34, s34, %d" % (6144 * 256))
    a("s_lshl_b32 s38, s38, 13\ns_add_u32 s34, s34, s38\ns_mul_i32 s38, s3, s39\ns_lshl_b32 s38, s38, 10\ns_add_u32 s36, s34, s38")
    SO = 46
    a("s_add_u32 s37, s28, s3\ns_and_b32 s37, s37, 7\ns_sub_u32 s34, s37, s39\ns_cselect_b32 s37, s37, s34")
    for t in range(RMAX):
        a("s_lshl_b32 s34, s37, 10\ns_add_u32 s%d, s34, s36" % (SO + t))
        if t < RMAX - 1: a("s_add_u32 s37, s37, 1\ns_cmp_eq_u32 s37, s39\ns_cselect_b32 s37, 0, s37")
    a("s_waitcnt lgkmcnt(0)")
    a("s_load_dword s56, s[26:27], 0")
    srd(40, 6, 64 << 20); srd(4, 8, 64 << 20)
    a("s_setprio 1")
    for r in list(range(KR, KR + 4 * NABS)) + list(range(VR, VR + 4 * NABS)): a("v_mov_b32 v%d, 0" % r)
    spin(FS0, sleep=0)
    stamp(1)
    assert vd and vd <= min(RSET)
    def kvload(t):
        if t < RMAX:
            a("buffer_load_dwordx4 %s, v16, s[40:43], s%d offen%s" % (vr(KR + 4 * t, 4), SO + t, nt))
        else:
            a("buffer_load_dwordx4 %s, v17, s[4:7], s%d offen%s" % (vr(VR + 4 * (t - RMAX), 4), SO + t - RMAX, nt))
    for t in range(2 * RMAX):
        d = kd if t < RMAX + 1 else vd
        if t % RMAX == 0:
            for R_ in RSET: a("s_cmp_eq_u32 s39, %d\ns_cbranch_scc1 L_kv%d" % (R_, t + RMAX - R_))
            if t == 0 and vdx:
                for t2 in range(2 * RMAX):
                    d2 = (kdx or kd) if t2 < RMAX + 1 else vdx
                    if t2 >= d2: a("s_waitcnt vmcnt(%d)" % (d2 - 1))
                    kvload(t2)
                a("s_branch L_kvdone")
        if vdx and t % RMAX == 0: continue
        if RMAX - t % RMAX in RSET: a.label("L_kv%d" % t)
        if t >= d: a("s_waitcnt vmcnt(%d)" % (d - 1))
        kvload(t)
    a.label("L_kvdone")
    addflag(CI)
    stamp(2)
    a("v_bfe_u32 v18, v0, 3, 1\nv_lshlrev_b32 v18, 8, v18\nv_lshl_add_u32 v18, v3, 6, v18\nv_and_b32 v19, 3, v0\nv_lshl_add_u32 v18, v19, 4, v18")
    a("v_and_b32 v19, 1, v0\nv_lshlrev_b32 v19, 4, v19\nv_mov_b32 v24, 0xffff\nv_lshlrev_b32 v24, v19, v24\nv_bfe_u32 v19, v0, 1, 2")
    for i in range(4):
        a("v_cmp_eq_u32 vcc, %d, v19\ns_nop 1\nv_cndmask_b32 v%d, 0, v24, vcc" % (i, 20 + i))
    a("s_mov_b32 s38, 0x%x" % f32bits(CSC))
    for t in range(NABS): a("s_cmp_lt_u32 s39, %d\ns_cselect_b32 s%d, 0xff800000, 0" % (RMAX - t, 10 + t))
    tag_setup()
    spin(FQ)
    stamp(3)
    a("ds_read_b128 v[24:27], v18 offset:%d\ns_waitcnt lgkmcnt(0)" % QV)
    for t in range(RMAX):
        a("v_mfma_f32_16x16x32_bf16 %s, %s, v[24:27], 0" % (vr(DR + 4 * t, 4), vr(KR + 4 * t, 4)))
    S, P = 32, 42
    for t in range(RMAX): a("v_mov_b32_dpp v%d, v%d quad_perm:[0,0,0,0] row_mask:0xf bank_mask:0xf" % (S + t, DR + 4 * t))
    for i in range(1, 4):
        for t in range(RMAX):
            a("v_add_f32_dpp v%d, v%d, v%d quad_perm:[%d,%d,%d,%d] row_mask:0xf bank_mask:0xf" % (S + t, DR + 4 * t + i, S + t, i, i, i, i))
    for t in range(NABS): a("v_add_f32 v%d, s%d, v%d" % (S + t, 10 + t, S + t))
    a("v_max3_f32 v28, v32, v33, v34\nv_max3_f32 v29, v35, v36, v37\nv_max3_f32 v28, v28, v38, v39\nv_max3_f32 v29, v29, v40, v41\nv_max_f32 v28, v28, v29")
    xor_reduce("v_max_f32", ["v28"], ["v30"])
    a("v_mul_f32 v28, s38, v28")
    for t in range(RMAX): a("v_fma_f32 v%d, v%d, s38, -v28" % (S + t, S + t))
    for t in range(RMAX): a("v_exp_f32 v%d, v%d" % (S + t, S + t))
    a("s_nop 0")
    for t in range(RMAX): a("v_cvt_pk_bf16_f32 v%d, v%d, v%d" % (P + t, S + t, S + t))
    a("v_add_f32 v29, v32, v33\nv_add_f32 v30, v34, v35\nv_add_f32 v31, v36, v37\nv_add_f32 v32, v38, v39\nv_add_f32 v33, v40, v41")
    a("v_add_f32 v29, v29, v30\nv_add_f32 v31, v31, v32\nv_add_f32 v29, v29, v33\nv_add_f32 v29, v29, v31")
    xor_reduce("v_add_f32", ["v29"], ["v30"])
    a("s_lshl_b32 s34, s3, 10\nv_lshl_add_u32 v30, v0, 4, s34\ns_lshl_b32 s34, s3, 9\nv_lshl_add_u32 v31, v0, 3, s34")
    a("ds_write_b64 v31, v[28:29] offset:%d" % ML)
    stamp(4)
    for i in range(4): a("v_and_b32 v%d, v%d, v%d" % (DR + i, P, 20 + i))
    for t in range(RMAX):
        if t + 1 < RMAX:
            for i in range(4): a("v_and_b32 v%d, v%d, v%d" % (DR + 4 * (t + 1) + i, P + t + 1, 20 + i))
        else:
            a("v_mov_b32 v2, 1\ns_nop 0")
        if RMAX - 1 - t < max(vd, vdx or 0): a("s_waitcnt vmcnt(%d)" % (RMAX - 1 - t))
        a("v_mfma_f32_16x16x32_bf16 v[24:27], %s, %s, %s" % (vr(VR + 4 * t, 4), vr(DR + 4 * t, 4), "0" if t == 0 else "v[24:27]"))
    a("v_bfe_u32 v34, v0, 3, 1\nv_lshlrev_b32 v32, 13, v34\nv_lshrrev_b32 v35, 1, v3\nv_lshl_add_u32 v32, v35, 12, v32\nv_and_b32 v36, 1, v3\nv_lshl_add_u32 v32, v36, 7, v32\nv_and_b32 v36, 7, v0\nv_lshl_add_u32 v32, v36, 4, v32")
    a("ds_write_b128 v30, v[24:27] offset:%d" % ACC)
    a("s_mov_b64 exec, 1\nds_add_rtn_u32 v2, v1, v2 offset:%d\ns_mov_b64 exec, -1" % CA)
    a("v_lshlrev_b32 v30, 4, v0\nv_lshlrev_b32 v31, 3, v0\nv_lshlrev_b32 v33, 7, v34")
    a("s_lshl_b32 s34, s29, 14\ns_lshl_b32 s35, s30, 8\ns_add_u32 s34, s34, s35")
    wsbase(60, "s34", OIN)
    a("s_lshl_b32 s34, s29, 8\ns_lshl_b32 s35, s30, 3\ns_add_u32 s34, s34, s35")
    wsbase(62, "s34", MLIN)
    a("s_waitcnt lgkmcnt(0)\nv_readfirstlane_b32 s34, v2")
    stamp(5)
    a("s_cmp_lg_u32 s34, 7\ns_cbranch_scc1 L_att_done")
    for w in range(8): a("ds_read_b64 %s, v31 offset:%d" % (vr(40 + 2 * w, 2), ML + w * 512))
    for w in range(7): a("ds_read_b128 %s, v30 offset:%d" % (vr(KR + 4 * w, 4), ACC + w * 1024))
    a("s_waitcnt lgkmcnt(7)")
    a("ds_read_b128 %s, v30 offset:%d" % (vr(KR + 28, 4), ACC + 7 * 1024))
    a("v_max3_f32 v28, v40, v42, v44\nv_max3_f32 v28, v28, v46, v48\nv_max3_f32 v28, v28, v50, v52\nv_max_f32 v28, v28, v54\nv_and_b32 v28, s58, v28")
    for w in range(8): a("v_sub_f32 v%d, v%d, v28" % (40 + 2 * w, 40 + 2 * w))
    for w in range(8): a("v_exp_f32 v%d, v%d" % (40 + 2 * w, 40 + 2 * w))
    a("s_waitcnt lgkmcnt(0)")
    for i in range(4): a("v_mul_f32 v%d, v40, v%d" % (24 + i, KR + i))
    for w in range(1, 8):
        for i in range(4): a("v_fmac_f32 v%d, v%d, v%d" % (24 + i, 40 + 2 * w, KR + 4 * w + i))
    for i in range(4): a("v_bfi_b32 v%d, s58, v%d, v11" % (24 + i, 24 + i))
    publish("v32", "v30", "v[24:27]", "s[60:61]")
    a("v_mul_f32 v29, v40, v41")
    for w in range(1, 8): a("v_fmac_f32 v29, v%d, v%d" % (40 + 2 * w, 41 + 2 * w))
    a("v_bfi_b32 v36, s58, v28, v11\nv_bfi_b32 v37, s58, v29, v11")
    a("s_mov_b64 exec, 0x101")
    publish("v33", "v31", "v[36:37]", "s[62:63]", 2)
    a("s_mov_b64 exec, -1")
    a.label("L_att_done")
    stamp(6)
    a("s_cmp_ge_u32 s31, 2\ns_cbranch_scc1 L_rpath")
    a("s_lshl_b32 s34, s3, 2\nv_mov_b32 v16, s34")
    spin(FW, vzero="v16")
    a("s_mov_b32 s39, s3")
    a.label("L_frag")
    stamp(7)
    BF = 64
    a("s_lshl_b32 s34, s39, 13\ns_add_u32 s34, s34, %d" % WB)
    for T in range(4): a("v_add_u32 v%d, s34, v%d" % (16 + T, 12 + T))
    cnt = 0
    for tau in range(2):
        for T in range(4):
            for eta in range(2):
                if cnt == 14: a("s_waitcnt lgkmcnt(6)"); cnt = 6
                a("ds_read_b64_tr_b16 %s, v%d offset:%d" % (vr(BF + tau * 16 + T * 4 + eta * 2, 2), 16 + T, tau * 4096 + eta * 512)); cnt += 1
    a("v_bfe_u32 v20, v0, 2, 3\ns_movk_i32 s34, %d\nv_and_b32 v21, 3, v0\nv_lshlrev_b32 v21, 4, v21\nv_mad_u32_u24 v20, v20, s34, v21" % RSTRIDE)
    a("v_lshlrev_b32 v21, 7, v10\nv_lshl_add_u32 v21, v3, 4, v21\nv_and_b32 v22, 1, v3\nv_lshlrev_b32 v22, 2, v22")
    a("s_mul_i32 s34, s39, %d\ns_lshl_b32 s35, s33, 6\ns_add_u32 s34, s34, s35" % (8 * RSTRIDE))
    wsbase(60, "s34", RIN)
    spin(FA, val=2, sleep=psleep)
    stamp(8)
    a("ds_read_b128 v[24:27], v21 offset:%d\nds_read_b128 v[28:31], v21 offset:%d\nds_read_b32 v23, v22 offset:%d" % (AV, AV + 64, GS))
    a("s_waitcnt lgkmcnt(2)")
    for T in range(4): a("v_mfma_f32_16x16x32_bf16 %s, v[24:27], %s, 0" % (vr(32 + 4 * T, 4), vr(BF + 4 * T, 4)))
    a("s_waitcnt lgkmcnt(1)")
    for T in range(4): a("v_mfma_f32_16x16x32_bf16 %s, v[28:31], %s, %s" % (vr(32 + 4 * T, 4), vr(BF + 16 + 4 * T, 4), vr(32 + 4 * T, 4)))
    a("s_waitcnt lgkmcnt(0)\ns_nop 3")
    for T in range(4): a("v_mul_f32 v%d, v23, v%d" % (24 + T, 32 + 4 * T) + ("\ns_nop 0" if T < 3 else ""))
    for T in range(4): a("v_bfi_b32 v%d, s58, v%d, v11" % (24 + T, 24 + T))
    a("s_mov_b32 exec_hi, 0\nglobal_store_dwordx4 v20, v[24:27], s[60:61] sc1\ns_mov_b64 exec, -1")
    stamp(9)
    a("s_branch L_fin")

    a.label("L_loader")
    a("s_cmp_ge_u32 s31, 2\ns_cbranch_scc1 L_fin")
    a("s_movk_i32 s34, 1152\nv_mad_u32_u24 v16, v4, s34, v5\nv_mad_u32_u24 v17, v4, s34, v6\nv_mov_b32 v18, 1")
    a("s_mul_i32 s36, s32, %d\ns_mov_b32 m0, %d" % (64 * 1152, WB))
    a("s_waitcnt lgkmcnt(0)\ns_load_dword s56, s[26:27], 0")
    a("s_cmp_eq_u32 s31, 0\ns_cselect_b32 s48, s12, s18\ns_cselect_b32 s49, s13, s19\ns_mov_b32 s50, 0x%x\ns_mov_b32 s51, 0x20000" % (4608 * 576 * 2))
    a("s_cselect_b32 s50, 0x%x, s50" % (4096 * 576 * 2))
    tag_setup()
    def wloop(ld, flag):
        spin(flag, val=8, sleep=2)
        stamp(1)
        n = 8; tot = 72; flagged = 0
        for k in range(tot):
            s_, rg = divmod(k, n)
            if k >= ld:
                a("s_waitcnt vmcnt(%d)" % (ld - 1))
                done = k - ld + 1
                while (flagged + 1) * n <= done:
                    a("ds_write_b32 v1, v18 offset:%d" % (FW + 4 * flagged)); flagged += 1
            a("buffer_load_dwordx4 %s, s[48:51], s36 offen%s lds" % ("v16" if rg % 2 == 0 else "v17", nt))
            if k < tot - 1:
                a("s_add_u32 m0, m0, 1024")
                if rg < n - 1: a("s_add_u32 s36, s36, %d" % (8 * 1152))
                else: a("s_sub_u32 s36, s36, %d" % ((n - 1) * 8 * 1152 - 128))
        stamp(2)
        a("s_setprio 2")
        while flagged < 8:
            a("s_waitcnt vmcnt(%d)\nds_write_b32 v1, v18 offset:%d" % (tot - (flagged + 1) * n, FW + 4 * flagged)); flagged += 1
        a("s_mov_b32 s39, 8\ns_waitcnt vmcnt(0)")
        a("s_branch L_frag")
    if ldepthF != ldepth:
        a("s_cmp_eq_u32 s31, 0\ns_cbranch_scc0 L_ld_f")
        wloop(ldepth, CI)
        a.label("L_ld_f")
        wloop(ldepthF, CA if gf_late else CI)
    else:
        if gf_late:
            a("s_cmp_eq_u32 s31, 0\ns_cbranch_scc1 L_ld_o")
            spin(CA, val=8, sleep=2)
            a.label("L_ld_o")
        wloop(ldepth, CI)

    a.label("L_rpath")
    a("s_cmp_lg_u32 s31, %d\ns_cbranch_scc1 L_fin" % RH)
    a("s_mul_i32 s34, s32, %d\ns_lshl_b32 s35, s3, 10\ns_add_u32 s34, s34, s35" % RSTRIDE)
    wsbase(60, "s34", RIN)
    a("s_cmp_eq_u32 s3, 8\ns_cselect_b32 s35, 31, 63\nv_and_b32 v16, s35, v0\nv_lshlrev_b32 v16, 4, v16")
    a("v_and_b32 v17, 3, v0\nv_lshlrev_b32 v17, 4, v17\ns_lshl_b32 s34, s3, 6\nv_add_u32 v19, s34, v17")
    spin(FH, sleep=2)
    stamp(7)
    poll([(32, "global_load_dwordx4 v[32:35], v16, s[60:61] sc1")], "v18", "R", rsleep)
    stamp(8)
    a("s_cmp_lg_u32 s3, 8\ns_cbranch_scc1 L_rfull")
    a("s_mov_b32 exec_lo, 0\nv_mov_b32 v32, 0\nv_mov_b32 v33, 0\nv_mov_b32 v34, 0\nv_mov_b32 v35, 0\ns_mov_b64 exec, -1\ns_nop 0")
    a.label("L_rfull")
    for sh in (4, 8):
        for i in range(4): a("v_add_f32_dpp v%d, v%d, v%d row_ror:%d row_mask:0xf bank_mask:0xf" % (32 + i, 32 + i, 32 + i, sh))
    xor_reduce("v_add_f32", ["v32", "v33", "v34", "v35"], ["v36", "v37", "v38", "v39"])
    a("v_mov_b32 v2, 1")
    a("ds_write_b128 v19, v[32:35] offset:%d" % WQ)
    a("s_mov_b64 exec, 1\nds_add_rtn_u32 v2, v1, v2 offset:%d\ns_mov_b64 exec, -1" % CR)
    a("s_lshr_b32 s34, s32, 3\ns_lshl_b32 s34, s34, 7\ns_bfe_u32 s35, s32, 0x10002\ns_mul_i32 s35, s35, 1152\ns_add_u32 s34, s34, s35\ns_and_b32 s35, s32, 3\ns_lshl_b32 s35, s35, 3\ns_add_u32 s34, s34, s35")
    a("v_lshrrev_b32 v19, 3, v17\nv_add_u32 v19, s34, v19")
    a("s_waitcnt lgkmcnt(0)\nv_readfirstlane_b32 s34, v2")
    a("s_cmp_lg_u32 s34, 8\ns_cbranch_scc1 L_fin")
    for w in range(9): a("ds_read_b128 %s, v17 offset:%d" % (vr(64 + 4 * w, 4), WQ + w * 64))
    for w in range(1, 9):
        a("s_waitcnt lgkmcnt(%d)" % (8 - w))
        a("v_pk_add_f32 v[64:65], v[64:65], %s\nv_pk_add_f32 v[66:67], v[66:67], %s" % (vr(64 + 4 * w, 2), vr(66 + 4 * w, 2)))
    a("v_cvt_pk_bf16_f32 v32, v64, v65\nv_cvt_pk_bf16_f32 v33, v66, v67")
    a("s_mov_b64 exec, 0xf")
    a("global_store_short v19, v32, s[22:23]\nglobal_store_short_d16_hi v19, v32, s[22:23] offset:32\nglobal_store_short v19, v33, s[22:23] offset:64\nglobal_store_short_d16_hi v19, v33, s[22:23] offset:96")
    a("s_cmp_lg_u32 s32, 0\ns_cbranch_scc1 L_rdone")
    a("s_add_u32 s34, s56, 1\nv_mov_b32 v2, s34\ns_mov_b64 exec, 1\nglobal_store_dword v1, v2, s[26:27]")
    a.label("L_rdone")
    a("s_mov_b64 exec, -1")
    stamp(9)
    a("s_branch L_fin")

    a.label("L_qaux")
    a("s_setprio 3")
    a("v_lshl_add_u32 v17, v4, 13, v5\nv_lshl_add_u32 v18, v4, 13, v6\nv_lshlrev_b32 v16, 4, v0")
    a("s_and_b32 s34, s28, 3\ns_mul_i32 s36, s34, %d\ns_lshr_b32 s35, s28, 2\ns_lshl_b32 s35, s35, 7\ns_add_u32 s36, s36, s35" % (144 * 8192))
    a("s_mov_b32 m0, %d\ns_waitcnt lgkmcnt(0)" % XS)
    srd(40, 4, 2304)
    for k in range(3): a("buffer_load_dwordx4 v16, s[40:43], 0 offen offset:%d lds" % (k * 1024))
    srd(48, 10, 576 * 4096 * 2)
    a("s_mov_b32 m0, %d\ns_load_dword s56, s[26:27], 0" % WQ)
    for rg in range(18):
        a("buffer_load_dwordx4 %s, s[48:51], s36 offen%s lds" % ("v17" if rg % 2 == 0 else "v18", nt))
        if rg < 17: a("s_add_u32 m0, m0, 1024\ns_add_u32 s36, s36, %d" % (8 * 8192))
    setflag(FS0)
    a("v_mov_b32 v20, 0\nv_mov_b32 v21, 0\nv_mov_b32 v22, 0\nv_mov_b32 v23, 0")
    a("ds_write_b128 v16, v[20:23] offset:%d\nds_write_b128 v16, v[20:23] offset:%d" % (WQ + 144 * 128, WQ + 152 * 128))
    a("s_branch L_common2")
    a.label("L_qaux2")
    stamp(1)
    tag_setup()
    a("v_and_b32 v16, 15, v0\nv_lshlrev_b32 v16, 4, v16\nv_lshl_add_u32 v17, v3, 12, v16")
    a("s_lshl_b32 s34, s29, 13\ns_and_b32 s35, s28, 3\ns_lshl_b32 s35, s35, 10\ns_add_u32 s34, s34, s35\ns_bfe_u32 s35, s28, 0x20002\ns_lshl_b32 s35, s35, 8\ns_add_u32 s34, s34, s35")
    wsbase(60, "s34", QIN)
    a("s_lshl_b32 s34, s29, 13\ns_lshr_b32 s35, s30, 3\ns_lshl_b32 s35, s35, 12\ns_add_u32 s34, s34, s35")
    wsbase(62, "s34", QIN)
    a("s_and_b32 s35, s28, 3\ns_mul_i32 s35, s35, 288")
    gemv1(5, WQ, "s35", 32, 18, 18)
    setflag(FX)
    stamp(2)
    a("s_nop 3")
    for T in range(4): a("v_bfi_b32 v%d, s58, v%d, v11" % (24 + T, 32 + 4 * T))
    a("s_mov_b32 exec_hi, 0")
    publish("v17", "v18", "v[24:27]", "s[60:61]")
    a("s_mov_b64 exec, -1")
    stamp(3)
    a("v_lshlrev_b32 v16, 4, v0")
    a("v_and_b32 v17, 15, v0\nv_lshlrev_b32 v17, 1, v17\nv_lshl_add_u32 v17, v3, 7, v17")
    poll([(64 + 4 * k, "global_load_dwordx4 %s, v16, s[62:63] offset:%d sc1" % (vr(64 + 4 * k, 4), 1024 * k)) for k in range(4)], "v18", "Q", voffs=(16,))
    for i in range(4): a("v_add_f32 v%d, v%d, v%d\nv_add_f32 v%d, v%d, v%d" % (64 + i, 64 + i, 68 + i, 72 + i, 72 + i, 76 + i))
    for i in range(4): a("v_add_f32 v%d, v%d, v%d" % (64 + i, 64 + i, 72 + i))
    a("v_cvt_pk_bf16_f32 v64, v64, v65\nv_cvt_pk_bf16_f32 v65, v66, v67")
    a("ds_write_b16 v17, v64 offset:%d\nds_write_b16_d16_hi v17, v64 offset:%d\nds_write_b16 v17, v65 offset:%d\nds_write_b16_d16_hi v17, v65 offset:%d" % (QV, QV + 32, QV + 64, QV + 96))
    setflag(FQ)
    stamp(4)
    a("s_cmp_ge_u32 s31, 2\ns_cbranch_scc1 L_rpath")
    a("s_cmp_eq_u32 s31, 0\ns_cbranch_scc1 L_q_o")
    a("s_lshl_b32 s34, s32, 9")
    wsbase(60, "s34", HIN)
    a("v_and_b32 v16, 31, v0\nv_lshlrev_b32 v16, 4, v16")
    spin(CI, val=8, sleep=2)
    stamp(5)
    poll([(64, "global_load_dwordx4 v[64:67], v16, s[60:61] sc1")], "v18", "H", sleep=2, voffs=(16,))
    stamp(6)
    a("v_cvt_pk_bf16_f32 v64, v64, v65\nv_cvt_pk_bf16_f32 v65, v66, v67\nv_mov_b32 v2, 1\ns_mov_b32 exec_hi, 0")
    a("ds_write_b16 v17, v64 offset:%d\nds_write_b16_d16_hi v17, v64 offset:%d\nds_write_b16 v17, v65 offset:%d\nds_write_b16_d16_hi v17, v65 offset:%d" % (AV, AV + 32, AV + 64, AV + 96))
    a("s_mov_b64 exec, 1\nds_add_u32 v1, v2 offset:%d\ns_mov_b64 exec, -1" % FA)
    stamp(7)
    a("s_branch L_fin")
    a.label("L_q_o")
    a("s_lshl_b32 s34, s32, 12")
    wsbase(60, "s34", OIN)
    a("s_lshr_b32 s34, s32, 1\ns_lshl_b32 s34, s34, 7")
    wsbase(62, "s34", MLIN)
    a("v_lshrrev_b32 v18, 5, v0\nv_and_b32 v19, 1, v3\nv_lshlrev_b32 v16, 11, v18\nv_lshl_add_u32 v16, v19, 8, v16\nv_and_b32 v20, 15, v0\nv_lshl_add_u32 v16, v20, 4, v16")
    a("v_lshlrev_b32 v17, 6, v18\nv_lshl_add_u32 v17, v19, 3, v17")
    a("v_lshlrev_b32 v21, 7, v18\nv_bfe_u32 v19, v0, 3, 1\nv_lshl_add_u32 v21, v19, 6, v21\nv_and_b32 v19, 7, v0\nv_lshl_add_u32 v21, v19, 1, v21")
    spin(CA, val=8, sleep=2)
    stamp(5)
    OD, OM = 96, 112
    poll([(OM + 4 * k, "global_load_dwordx2 %s, v17, s[62:63] offset:%d sc1" % (vr(OM + 4 * k, 2), 16 * k), 2) for k in range(4)] +
         [(OD + 4 * k, "global_load_dwordx4 %s, v16, s[60:61] offset:%d sc1" % (vr(OD + 4 * k, 4), 512 * k)) for k in range(4)], "v18", "O", voffs=(16, 17))
    stamp(6)
    a("v_max3_f32 v24, v%d, v%d, v%d\nv_max_f32 v24, v24, v%d" % (OM, OM + 4, OM + 8, OM + 12))
    a("v_mov_b32 v25, v24\ns_nop 1\nv_permlane16_swap_b32 v24, v25\nv_max_f32 v24, v24, v25")
    for k in range(4): a("v_sub_f32 v%d, v%d, v24" % (OM + 4 * k, OM + 4 * k))
    for k in range(4): a("v_exp_f32 v%d, v%d" % (OM + 4 * k, OM + 4 * k))
    a("s_nop 0\nv_mul_f32 v28, v%d, v%d" % (OM, OM + 1))
    for k in range(1, 4): a("v_fmac_f32 v28, v%d, v%d" % (OM + 4 * k, OM + 4 * k + 1))
    for i in range(4): a("v_mul_f32 v%d, v%d, v%d" % (24 + i, OM, OD + i))
    for k in range(1, 4):
        for i in range(4): a("v_fmac_f32 v%d, v%d, v%d" % (24 + i, OM + 4 * k, OD + 4 * k + i))
    for i in (4, 0, 1, 2, 3): a("v_mov_b32 v%d, v%d" % (32 + i, 24 + i))
    for i in (4, 0, 1, 2, 3): a("v_permlane16_swap_b32 v%d, v%d" % (24 + i, 32 + i))
    a("v_add_f32 v28, v28, v36\nv_rcp_f32 v28, v28")
    for i in range(4): a("v_add_f32 v%d, v%d, v%d" % (24 + i, 24 + i, 32 + i))
    for i in range(4): a("v_mul_f32 v%d, v%d, v28" % (24 + i, 24 + i))
    a("v_cvt_pk_bf16_f32 v24, v24, v25\nv_cvt_pk_bf16_f32 v25, v26, v27\nv_mov_b32 v2, 1")
    a("ds_write_b16 v21, v24 offset:%d\nds_write_b16_d16_hi v21, v24 offset:%d\nds_write_b16 v21, v25 offset:%d\nds_write_b16_d16_hi v21, v25 offset:%d" % (AV, AV + 16, AV + 32, AV + 48))
    a("s_mov_b64 exec, 1\nds_add_u32 v1, v2 offset:%d\ns_mov_b64 exec, -1" % FA)
    stamp(7)
    a("s_branch L_fin")

    a.label("L_haux")
    a("s_cmp_eq_u32 s31, %d\ns_cbranch_scc1 L_fin" % RX)
    a("s_cmp_eq_u32 s31, %d\ns_cbranch_scc1 L_h" % RH)
    a("v_lshlrev_b32 v16, 4, v0\ns_mov_b32 m0, %d\ns_waitcnt lgkmcnt(0)" % GW)
    srd(44, 20, 1152)
    for k in range(2): a("buffer_load_dwordx4 v16, s[44:47], 0 offen offset:%d lds" % (k * 1024))
    a("v_and_b32 v16, 31, v0\nv_lshlrev_b32 v16, 2, v16\nv_lshrrev_b32 v17, 5, v0\ns_movk_i32 s34, 1152\nv_mad_u32_u24 v17, v17, s34, v16")
    spin(FX, sleep=2)
    a("s_waitcnt vmcnt(0)")
    for k in range(9):
        a("ds_read_b32 v%d, v17 offset:%d" % (64 + k, XS + 128 * k))
        if k == 6: a("s_waitcnt lgkmcnt(4)")
    for k in range(9):
        a("ds_read_b32 v%d, v16 offset:%d" % (76 + k, GW + 128 * k))
        if k in (2, 6): a("s_waitcnt lgkmcnt(6)")
    a("s_mov_b32 s35, 0xffff0000\nv_mov_b32 v18, 0\ns_waitcnt lgkmcnt(0)")
    for k in range(9):
        x, w = 64 + k, 76 + k
        a("v_lshlrev_b32 v20, 16, v%d\nv_and_b32 v21, s35, v%d\nv_lshlrev_b32 v22, 16, v%d\nv_and_b32 v23, s35, v%d" % (x, x, w, w))
        a("v_mul_f32 v20, v20, v22\nv_mul_f32 v21, v21, v23\nv_cvt_pk_bf16_f32 v20, v20, v21\nv_lshlrev_b32 v21, 16, v20\nv_and_b32 v20, s35, v20\nv_add_f32 v18, v18, v21\nv_add_f32 v18, v18, v20")
    a("s_nop 1")
    for sh in (1, 2, 4, 8):
        a("v_add_f32_dpp v18, v18, v18 row_ror:%d row_mask:0xf bank_mask:0xf\ns_nop 1" % sh)
    a("v_mov_b32 v19, v18\ns_nop 1\nv_permlane16_swap_b32 v18, v19\nv_add_f32 v18, v18, v19")
    a("v_cvt_pk_bf16_f32 v18, v18, v18\nv_and_b32 v18, s35, v18\nv_mul_f32 v18, 0x%x, v18\nv_exp_f32 v18, v18\ns_nop 0\nv_add_f32 v18, 1.0, v18\nv_rcp_f32 v18, v18\ns_nop 0" % f32bits(-math.log2(math.e)))
    a("v_cvt_pk_bf16_f32 v18, v18, v18\nv_and_b32 v18, s35, v18\nv_sub_f32 v19, 1.0, v18\nv_cvt_pk_bf16_f32 v19, v19, v19\nv_and_b32 v19, s35, v19")
    a("v_lshrrev_b32 v17, 5, v0\nv_lshlrev_b32 v17, 2, v17")
    a("s_cmp_eq_u32 s31, 0\ns_cselect_b64 vcc, -1, 0\nv_cndmask_b32 v18, v19, v18, vcc")
    a("ds_write_b32 v17, v18 offset:%d" % GS)
    addflag(FA)
    a("s_branch L_fin")
    a.label("L_h")
    a("s_movk_i32 s34, 9216\nv_mad_u32_u24 v50, v4, s34, v5\nv_mad_u32_u24 v51, v4, s34, v6")
    a("s_lshl_b32 s36, s33, 7\ns_waitcnt lgkmcnt(0)\ns_load_dword s56, s[26:27], 0")
    srd(52, 16, 576 * 4608 * 2)
    a("s_lshl_b32 s34, s33, 9")
    wsbase(60, "s34", HIN)
    a("s_setprio 2\ns_mov_b32 m0, %d" % WB)
    tag_setup()
    spin(FX, sleep=4)
    spin(CI, val=8, sleep=2)
    stamp(1)
    def w1_issue(step):
        for r in range(4):
            if step or r: a("s_add_u32 m0, m0, 1024\ns_add_u32 s36, s36, %d" % (8 * 9216))
            a("buffer_load_dwordx4 %s, s[52:55], s36 offen%s lds" % ("v50" if r % 2 == 0 else "v51", nt))
    for st_ in range(hahead): w1_issue(st_)
    def dma(tau):
        nx = tau + hahead
        if nx < 18:
            w1_issue(nx); return 4
        return 0
    gemv1(18, WB, None, 32, 4 * hahead, 72, dma=dma)
    stamp(2)
    a("v_and_b32 v17, 31, v0\nv_lshlrev_b32 v17, 4, v17\ns_nop 3")
    for T in range(4): a("v_max_f32 v%d, 0, v%d" % (24 + T, 32 + 4 * T))
    for T in range(4): a("v_bfi_b32 v%d, s58, v%d, v11" % (24 + T, 24 + T))
    a("s_mov_b32 exec_hi, 0")
    publish("v17", "v18", "v[24:27]", "s[60:61]")
    a("s_mov_b64 exec, -1")
    setflag(FH)
    stamp(3)

    a.label("L_fin")
    if stamps:
        stamp(NST - 1)
        a("s_mul_i32 s34, s2, %d\ns_add_u32 s34, s34, s3\ns_lshl_b32 s34, s34, 7" % NW)
        wsbase(60, "s34", 0x8000000)
        a("s_mov_b64 exec, 1")
        for k in range(NST):
            a("v_mov_b32 v12, s%d\nv_mov_b32 v13, s%d\nglobal_store_dwordx2 v1, v[12:13], s[60:61] offset:%d\ns_nop 1" % (64 + 2 * k, 65 + 2 * k, 8 * k))
        for k in range(4):
            a("v_mov_b32 v12, s%d\nv_mov_b32 v13, 0\nglobal_store_dwordx2 v1, v[12:13], s[60:61] offset:%d\ns_nop 1" % (90 + k, 8 * (NST + k)))
    a.label("L_end")
    a("s_endpgm")
    return wrap(a.text(), 256, NW * 64, LDS_TOTAL, 152)

if __name__ == "__main__":
    best = dict(gf_late=True, ldepth=40, vdx=6)
    open("v6.s", "w").write(gen(**best))
    open("v6_nopf.s", "w").write(gen(pf=False, **best))
    open("v6s.s", "w").write(gen(stamps=True, **best))
    open("v6s_nopf.s", "w").write(gen(stamps=True, pf=False, **best))
```
